```python
import torch

def _softmax(x, axis=-1):
    return torch.softmax(x, dim=axis)
def _gelu(x):
    return torch.nn.functional.gelu(x, approximate="tanh")
def _silu(x):
    return torch.nn.functional.silu(x)
def _sigmoid(x):
    return torch.sigmoid(x)
def _layernorm(x, axis=-1, eps=1e-5):
    m = x.mean(dim=axis, keepdim=True)
    v = x.var(dim=axis, keepdim=True, unbiased=False)
    return (x - m) / torch.sqrt(v + eps)
def _scatter_add(tgt, idx, src, axis=0):
    return tgt.clone().index_add_(axis, idx, src)
def _segment_sum(src, seg, n):
    out = torch.zeros((n,) + src.shape[1:], dtype=src.dtype)
    return out.index_add_(0, seg, src)
def _pad(x, pw):
    flat = tuple(v for pair in reversed(pw) for v in pair)
    return torch.nn.functional.pad(x, flat)

kernel_name = 'concat_heads__sliding_block_cached__gqa_block_cached__decode'

def setup_inputs():

    _w = (lambda a: (lambda t: t.to(torch.bfloat16) if t.is_floating_point() else t)(torch.as_tensor(a)))
    def _A_setup():
        B, Sq, D = 2, 1, 512
        Hq, Hkv, Sk, Dh = 32, 8, 8192, 128
        assert Hq % Hkv == 0, (Hq, Hkv)
        return {
            "x": _w((lambda *s: torch.randn(*s, dtype=torch.bfloat16) * 0.2)(B, Sq, D)),
            "k_cache": _w((lambda *s: torch.randn(*s, dtype=torch.bfloat16) * 3.2)(B, Hkv, Sk, Dh)),
            "v_cache": _w((lambda *s: torch.randn(*s, dtype=torch.bfloat16) * 1.6)(B, Hkv, Sk, Dh)),
            "wq": _w((lambda *s: torch.randn(*s, dtype=torch.bfloat16) * 3.2)(D, Hq * Dh) * (D ** -0.5)),
            "wo": _w((lambda *s: torch.randn(*s, dtype=torch.bfloat16) * 1.6)(Hq * Dh, D) * ((Hq * Dh) ** -0.5)),
        }
    _A_in = _A_setup()

    def _B_setup():
        B, Sq, D = 2, 1, 512
        Hq, Hkv, Sk, Dh = 32, 8, 8192, 128
        assert Hq % Hkv == 0, (Hq, Hkv)
        return {
            "x": _w((lambda *s: torch.randn(*s, dtype=torch.bfloat16) * 0.4)(B, Sq, D)),
            "k_cache": _w((lambda *s: torch.randn(*s, dtype=torch.bfloat16) * 3.2)(B, Hkv, Sk, Dh)),
            "v_cache": _w((lambda *s: torch.randn(*s, dtype=torch.bfloat16) * 0.8)(B, Hkv, Sk, Dh)),
            "wq": _w((lambda *s: torch.randn(*s, dtype=torch.bfloat16) * 3.2)(D, Hq * Dh) * (D ** -0.5)),
            "wo": _w((lambda *s: torch.randn(*s, dtype=torch.bfloat16) * 0.8)(Hq * Dh, D) * ((Hq * Dh) ** -0.5)),
        }
    _B_in = _B_setup()

    return {
        "A_x": _A_in["x"],
        "A_k_cache": _A_in["k_cache"],
        "A_v_cache": _A_in["v_cache"],
        "A_wq": _A_in["wq"],
        "A_wo": _A_in["wo"],
        "B_x": _B_in["x"],
        "B_k_cache": _B_in["k_cache"],
        "B_v_cache": _B_in["v_cache"],
        "B_wq": _B_in["wq"],
        "B_wo": _B_in["wo"],
    }

def reference(A_x, A_k_cache, A_v_cache, A_wq, A_wo, B_x, B_k_cache, B_v_cache, B_wq, B_wo):
    def _A_ref(x, k_cache, v_cache, wq, wo):
        B, Sq, D = x.shape
        Hq, Dh = 32, 128
        Hkv, Sk = k_cache.shape[1], k_cache.shape[2]
        W = min(4096, max(256, Sk // 4))
        rep = Hq // Hkv
        q = (lambda x, *d: x.permute(*d))((x @ wq).reshape(B, Sq, Hq, Dh), 0, 2, 1, 3)
        k = (lambda x, n, axis: torch.repeat_interleave(x, n, dim=axis))(k_cache[:, :, Sk - W:, :], rep, axis=1)
        v = (lambda x, n, axis: torch.repeat_interleave(x, n, dim=axis))(v_cache[:, :, Sk - W:, :], rep, axis=1)
        scores = torch.einsum("bhqd,bhkd->bhqk", q, k) * (Dh ** -0.5)
        p = _softmax(scores, axis=-1)
        o = torch.einsum("bhqk,bhkd->bhqd", p, v)
        return (lambda x, *d: x.permute(*d))(o, 0, 2, 1, 3).reshape(B, Sq, Hq * Dh) @ wo

    def _B_ref(x, k_cache, v_cache, wq, wo):
        B, Sq, D = x.shape
        Hq, Dh = 32, 128
        Hkv = k_cache.shape[1]
        rep = Hq // Hkv
        q = (lambda x, *d: x.permute(*d))((x @ wq).reshape(B, Sq, Hq, Dh), 0, 2, 1, 3)
        k = (lambda x, n, axis: torch.repeat_interleave(x, n, dim=axis))(k_cache, rep, axis=1)
        v = (lambda x, n, axis: torch.repeat_interleave(x, n, dim=axis))(v_cache, rep, axis=1)
        scores = torch.einsum("bhqd,bhkd->bhqk", q, k) * (Dh ** -0.5)
        p = _softmax(scores, axis=-1)
        o = torch.einsum("bhqk,bhkd->bhqd", p, v)
        return (lambda x, *d: x.permute(*d))(o, 0, 2, 1, 3).reshape(B, Sq, Hq * Dh) @ wo

    a = _A_ref(A_x, A_k_cache, A_v_cache, A_wq, A_wo)
    b = _B_ref(B_x, B_k_cache, B_v_cache, B_wq, B_wo)
    return torch.concatenate([a, b], axis=-1)
```

```python
import re

REG_RE = re.compile(r'^(-|abs\()?([vas])(\d+|\[(\d+):(\d+)\])\)?$')

def regs_of(tok):
    tok = tok.strip()
    if tok in ('vcc',): return [('s', 106), ('s', 107)]
    if tok == 'exec': return [('s', 126), ('s', 127)]
    if tok == 'exec_lo': return [('s', 126)]
    if tok == 'exec_hi': return [('s', 127)]
    if tok == 'm0': return [('s', 124)]
    m = REG_RE.match(tok)
    if not m: return []
    k = m.group(2)
    if m.group(4) is not None:
        return [(k, i) for i in range(int(m.group(4)), int(m.group(5)) + 1)]
    return [(k, int(m.group(3)))]

TRANS = ('v_exp_f32', 'v_log_f32', 'v_rcp_f32', 'v_rsq_f32', 'v_sqrt_f32', 'v_sin_f32', 'v_cos_f32')

class Ins:
    def __init__(self, text):
        self.text = text
        t = text.split(';')[0].strip()
        parts = t.split(None, 1)
        self.op = parts[0]
        rest = parts[1] if len(parts) > 1 else ''
        ops = []; cur = ''; depth = 0
        for ch in rest:
            if ch == '[': depth += 1
            if ch == ']': depth -= 1
            if ch == ',' and depth == 0: ops.append(cur.strip()); cur = ''
            else: cur += ch
        if cur.strip(): ops.append(cur.strip())
        self.mods = ''
        if ops:
            sp = ops[-1].split(None, 1)
            ops[-1] = sp[0]
            self.mods = sp[1] if len(sp) > 1 else ''
        self.ops = ops
        op = self.op
        self.is_mfma = op.startswith('v_mfma')
        self.is_valu = op.startswith('v_') and not self.is_mfma
        self.is_salu = op.startswith('s_')
        self.is_vmem = op.startswith(('buffer_', 'global_', 'flat_'))
        self.is_ds = op.startswith('ds_')
        self.is_dpp = ('quad_perm' in text or 'row_' in text) and self.is_valu
        self.is_trans = op.replace('_e32', '').replace('_e64', '') in TRANS
        self.is_permlane = op.startswith('v_permlane')
        self.is_readlane = op.startswith(('v_readfirstlane', 'v_readlane'))
        self.wr = []; self.rd = []
        R = [regs_of(o) for o in ops]
        if self.is_mfma:
            self.wr = R[0]; self.rdA = R[1]; self.rdB = R[2]; self.rdC = R[3] if len(R) > 3 else []
            self.rd = self.rdA + self.rdB + self.rdC
        elif self.is_valu:
            if op.startswith('v_cmp'):
                self.wr = R[0]; self.rd = sum(R[1:], [])
            elif self.is_permlane:
                self.wr = R[0] + R[1]; self.rd = R[0] + R[1]
            elif op.startswith(('v_fmac', 'v_dot2c')):
                self.wr = R[0]; self.rd = sum(R, [])
            elif op.startswith('v_cndmask') and len(ops) == 3:
                self.wr = R[0]; self.rd = sum(R[1:], []) + regs_of('vcc')
            elif op.startswith(('v_add_co', 'v_addc_co', 'v_sub_co')):
                self.wr = R[0] + R[1]; self.rd = sum(R[2:], [])
            else:
                self.wr = R[0]; self.rd = sum(R[1:], [])
                if self.is_dpp: self.rd += R[0]
        elif self.is_vmem:
            if 'load' in op:
                if ' lds' in text: self.rd = sum(R, [])
                else: self.wr = R[0]; self.rd = sum(R[1:], [])
            elif 'store' in op:
                self.rd = sum(R, [])
                self.store_data = R[0] if op.startswith('buffer_') else R[1]
            elif 'atomic' in op:
                self.rd = sum(R, [])
            else: pass
        elif self.is_ds:
            if 'read' in op or 'bpermute' in op or 'swizzle' in op:
                self.wr = R[0]; self.rd = sum(R[1:], [])
            else:
                self.rd = sum(R, [])
        elif self.is_salu:
            if op.startswith(('s_cmp', 's_cbranch', 's_branch', 's_waitcnt', 's_barrier', 's_nop', 's_endpgm', 's_sleep', 's_setprio', 's_bitcmp')):
                self.rd = sum(R, [])
            else:
                self.wr = R[0] if R else []; self.rd = sum(R[1:], [])
        self.nstates = 1
        if op == 's_nop': self.nstates = int(ops[0], 0) + 1

def overlap(a, b):
    return bool(set(a) & set(b))

def need_between(p, c):
    n = 0
    vw = [r for r in p.wr if r[0] in 'va']
    sw = [r for r in p.wr if r[0] == 's']
    if p.is_valu:
        if c.is_mfma and overlap(vw, c.rd): n = max(n, 2)
        if c.is_dpp and overlap(vw, c.rd): n = max(n, 2)
        if c.is_permlane and overlap(vw, c.rd): n = max(n, 2)
        if c.is_readlane and overlap(vw, c.rd): n = max(n, 1)
        if p.is_trans and (c.is_valu or c.is_mfma) and not c.is_trans and overlap(vw, c.rd): n = max(n, 1)
        if p.is_trans and c.is_trans and overlap(vw, c.rd): n = max(n, 1)
        if sw:
            if c.is_valu and overlap(sw, c.rd): n = max(n, 4 if c.is_readlane else 2)
            if c.is_vmem and overlap(sw, c.rd): n = max(n, 5)
            if c.is_salu and overlap(sw, c.rd): n = max(n, 1)
            if overlap(sw, [('s', 126), ('s', 127)]) and (c.is_dpp): n = max(n, 5)
    if p.is_mfma:
        D = p.wr
        if c.is_mfma:
            if overlap(D, c.rdA + c.rdB): n = max(n, 8)
            if overlap(D, c.rdC) and D != c.rdC: n = max(n, 6)
            if overlap(D, c.wr) and D != c.rdC: n = max(n, 6)
        elif c.is_valu or c.is_vmem or c.is_ds:
            if overlap(D, c.rd) or overlap(D, c.wr): n = max(n, 8)
        if c.is_valu and overlap(p.rdC, c.wr): n = max(n, 3)
    if p.is_vmem and 'store' in p.op and (p.op.endswith('x4') or p.op.endswith('x3')):
        if (c.is_valu or c.is_mfma or c.is_ds or c.is_vmem) and overlap(p.store_data, c.wr): n = max(n, 2)
    if p.is_salu and overlap(p.wr, [('s', 126), ('s', 127)]) and (c.is_dpp or c.is_permlane or c.is_readlane or c.is_mfma):
        n = max(n, 1)
    return n

class Asm:
    def __init__(self):
        self.items = []
        self.vm = []
    def __call__(self, s):
        for line in s.split('\n'):
            line = line.strip()
            if not line: continue
            if line.endswith(':') and ' ' not in line: self.items.append(('l', line))
            elif line.startswith((';', '.')): self.items.append(('c', line))
            else: self.items.append(('i', line))
    def label(self, n): self.items.append(('l', n + ':'))
    def comment(self, s): self.items.append(('c', '; ' + s))
    def vmem(self, s, tag):
        self(s); self.vm.append(tag)
    def wait_vm(self, tag, extra=''):
        hits = [i for i, t in enumerate(self.vm) if t == tag]
        if not hits: return
        idx = max(hits)
        n = len(self.vm) - 1 - idx
        self.vm = self.vm[idx + 1:]
        self(f's_waitcnt vmcnt({min(n, 63)}){extra}')
    def wait_vm_all(self, extra=''):
        self.vm = []
        self(f's_waitcnt vmcnt(0){extra}')
    def finalize(self, lookback=16):
        out = []; hist = []
        nn = 0
        for kind, t in self.items:
            if kind == 'l':
                out.append(t); continue
            if kind == 'c':
                out.append(t); continue
            c = Ins(t)
            need = 0; dist = 0
            for p in reversed(hist[-lookback:]):
                r = need_between(p, c)
                if r > dist: need = max(need, r - dist)
                dist += p.nstates
                if dist >= 12: break
            while need > 0:
                k = min(need, 16)
                nop = Ins(f's_nop {k-1}'); hist.append(nop); out.append('    ' + nop.text); need -= k; nn += 1
            hist.append(c); out.append('    ' + t)
        self.nops = nn
        return '\n'.join(out) + '\n'
```

```python
import sys
from asmlib import Asm

KN = "concat_heads__sliding_block_cached__gqa_block_cached__decode_kernel"

EPOCH = 0x0
QOFF  = 0x10000
PLOFF = 0x30000
POOFF = 0x40000
OPOFF = 0x140000
WSEND = 0x240000
STAMP = 0x300000
L_RQ, L_QL, L_ML, L_O2, L_RA, L_RB, L_END = 0, 2048, 4096, 4352, 8192, 16384, 24576

S_WS, S_KA, S_VA, S_KB, S_VB, S_WQ, S_WO, S_X, S_OUT = 28, 32, 36, 40, 44, 48, 52, 56, 60
sW, sKVH, sIDX, sB, sC, sTAG, sOffA, sOffB, sOffWQ, sOffWO = 64, 65, 66, 67, 68, 69, 70, 71, 72, 73
sT0, sT1, sT2, sT3 = 74, 75, 76, 77
sSelLo, sSelHi, sPk0, sPk1, sPk2, sUn0, sUn1, sSC = 80, 81, 82, 83, 84, 85, 86, 87
sCnt = 88
sQpub, sQcon, sPLpubA, sPLpubB, sPLconA, sPLconB, sPOpubA, sPOpubB, sPOcon, sOPpub = 89, 90, 91, 92, 93, 94, 95, 96, 97, 98
sStamp = 3
vLane, vK, vK2, vV, vV2, vWQ, vT0, vT1, vT2, vT3, vE, vWO, vWO2, vLds, vT4 = 1, 2, 3, 4, 5, 6, 7, 8, 9, 10, 11, 12, 13, 14, 15
QA, QB = 16, 20
S0 = 24
DT = 64
TT = 96
XF = 112
OA = 116
MS = 124
VB = [128, 160, 192, 224]

def srd(i): return f"s[{i}:{i+3}]"
def vr(i, n=4): return f"v[{i}:{i+n-1}]"
def ar(i, n=4): return f"a[{i}:{i+n-1}]"

def gen(stamps=False, nt=True, code_prefetch=False, spin=60000):
    a = Asm()
    NT = " nt" if nt else ""
    nstamp = [0]
    def stamp():
        if stamps:
            i = nstamp[0]; nstamp[0] += 1
            a(f"s_memrealtime s[100:101]")
            a(f"s_waitcnt lgkmcnt(0)")
            a(f"v_writelane_b32 v0, s100, {i}")
    a("s_cmp_ge_u32 s2, 256"); a("s_cbranch_scc1 L_end")
    a("s_load_dwordx16 s[4:19], s[0:1], 0")
    a("s_load_dwordx4 s[20:23], s[0:1], 64")
    a("s_load_dwordx2 s[24:25], s[0:1], 80")
    a("s_load_dwordx2 s[26:27], s[0:1], 96")
    if stamps:
        a("s_memrealtime s[100:101]")
    a("v_lshrrev_b32 v7, 6, v0")
    a(f"v_and_b32 v{vLane}, 63, v0")
    a(f"v_readfirstlane_b32 s{sW}, v7")
    a(f"s_and_b32 s{sKVH}, s2, 7"); a(f"s_lshr_b32 s{sIDX}, s2, 3"); a(f"s_lshr_b32 s{sB}, s{sIDX}, 4"); a(f"s_and_b32 s{sC}, s{sIDX}, 15")
    a(f"v_lshlrev_b32 v{vV}, 4, v{vLane}")
    a(f"v_add_u32 v{vV2}, 4096, v{vV}")
    a(f"v_lshrrev_b32 v{vT0}, 4, v{vLane}")
    a(f"v_and_b32 v{vT1}, 15, v{vLane}")
    a(f"v_bfe_u32 v{vT2}, v{vLane}, 2, 2")
    a(f"v_lshlrev_b32 v{vK}, 8, v{vT2}")
    a(f"v_lshl_add_u32 v{vK}, v{vT0}, 6, v{vK}")
    a(f"v_and_b32 v{vT2}, 3, v{vLane}")
    a(f"v_lshl_add_u32 v{vK}, v{vT2}, 4, v{vK}")
    a(f"v_add_u32 v{vK2}, 4096, v{vK}")
    a(f"v_lshrrev_b32 v{vT2}, 3, v{vLane}")
    a(f"v_lshlrev_b32 v{vWQ}, 16, v{vT2}")
    a(f"v_and_b32 v{vT2}, 7, v{vLane}")
    a(f"v_lshl_add_u32 v{vWQ}, v{vT2}, 4, v{vWQ}")
    a(f"v_bfe_u32 v{vT2}, v{vLane}, 2, 1")
    a(f"v_lshlrev_b32 v{vT3}, 10, v{vT2}")
    a(f"v_lshl_add_u32 v{vT3}, v{vT0}, 5, v{vT3}")
    a(f"v_and_b32 v{vT2}, 1, v{vLane}")
    a(f"v_lshl_add_u32 v{vT3}, v{vT2}, 4, v{vT3}")
    a(f"v_lshlrev_b32 v{vWO}, 13, v{vT0}")
    a(f"v_lshl_add_u32 v{vWO}, v{vT1}, 4, v{vWO}")
    a(f"v_add_u32 v{vWO2}, 4096, v{vWO}")
    a(f"s_lshl_b32 s{sT0}, s{sB}, 3"); a(f"s_add_u32 s{sT0}, s{sT0}, s{sKVH}"); a(f"s_lshl_b32 s{sT0}, s{sT0}, 21")
    a(f"s_lshl_b32 s{sT1}, s{sW}, 13"); a(f"s_add_u32 s{sT0}, s{sT0}, s{sT1}")
    a(f"s_lshl_b32 s{sT1}, s{sC}, 15"); a(f"s_add_u32 s{sOffA}, s{sT0}, s{sT1}"); a(f"s_add_u32 s{sOffA}, s{sOffA}, 0x180000")
    a(f"s_lshl_b32 s{sT1}, s{sC}, 17"); a(f"s_add_u32 s{sOffB}, s{sT0}, s{sT1}")
    a(f"s_and_b32 s{sT0}, s{sIDX}, 1"); a(f"s_lshl_b32 s{sT0}, s{sT0}, 2"); a(f"s_add_u32 s{sT0}, s{sT0}, s{sW}")
    a(f"s_lshl_b32 s{sT2}, s{sT0}, 7")
    a(f"s_lshl_b32 s{sOffWQ}, s{sT0}, 19")
    a(f"s_lshl_b32 s{sT1}, s{sKVH}, 10"); a(f"s_add_u32 s{sOffWQ}, s{sOffWQ}, s{sT1}")
    a(f"s_bfe_u32 s{sT1}, s{sIDX}, 0x30001"); a(f"s_lshl_b32 s{sT1}, s{sT1}, 7"); a(f"s_add_u32 s{sOffWQ}, s{sOffWQ}, s{sT1}")
    a(f"s_mov_b32 s{sSelLo}, 0x05040100"); a(f"s_mov_b32 s{sSelHi}, 0x07060302")
    a(f"s_mov_b32 s{sPk0}, 0x07060501"); a(f"s_mov_b32 s{sPk1}, 0x07060502"); a(f"s_mov_b32 s{sPk2}, 0x07060503")
    a(f"s_mov_b32 s{sUn0}, 0x04000c0c"); a(f"s_mov_b32 s{sUn1}, 0x0706000c")
    a(f"s_mov_b32 s{sSC}, 0x3e0293ee")
    for s_ in (S_WS, S_KA, S_VA, S_KB, S_VB, S_WQ, S_WO, S_X, S_OUT):
        a(f"s_mov_b32 s{s_+3}, 0x20000")
    a(f"s_mov_b32 s{S_WS+2}, {WSEND if not stamps else 0x400000}")
    for s_ in (S_KA, S_VA, S_KB, S_VB): a(f"s_mov_b32 s{s_+2}, 0x2000000")
    a(f"s_mov_b32 s{S_WQ+2}, 0x400000"); a(f"s_mov_b32 s{S_WO+2}, 0x400000"); a(f"s_mov_b32 s{S_X+2}, 2048"); a(f"s_mov_b32 s{S_OUT+2}, 4096")
    a("s_waitcnt lgkmcnt(0)")
    if stamps:
        a("v_mov_b32 v0, 0"); a("v_writelane_b32 v0, s100, 0"); nstamp[0] = 1
    def base(d, lo):
        a(f"s_mov_b32 s{d}, s{lo}"); a(f"s_and_b32 s{d+1}, s{lo+1}, 0xffff")
    base(S_WS, 26)
    a(f"s_cmp_eq_u32 s{sB}, 0")
    a(f"s_cselect_b32 s{S_WQ}, s10, s20"); a(f"s_cselect_b32 s{S_WQ+1}, s11, s21")
    a(f"s_cselect_b32 s{S_X}, s4, s14"); a(f"s_cselect_b32 s{S_X+1}, s5, s15")
    a(f"s_cselect_b32 s{S_WO}, s12, s22"); a(f"s_cselect_b32 s{S_WO+1}, s13, s23")
    a(f"s_and_b32 s{S_WQ+1}, s{S_WQ+1}, 0xffff"); a(f"s_and_b32 s{S_X+1}, s{S_X+1}, 0xffff"); a(f"s_and_b32 s{S_WO+1}, s{S_WO+1}, 0xffff")
    a.vmem(f"buffer_load_dword v{vE}, off, {srd(S_WS)}, 0 offset:{EPOCH} sc1", "E")
    a.vmem(f"buffer_load_dwordx4 {vr(XF)}, v{vT3}, {srd(S_X)}, s{sT2} offen", "x")
    for j in range(8):
        a.vmem(f"buffer_load_dwordx4 {vr(S0+4*j)}, v{vWQ}, {srd(S_WQ)}, s{sOffWQ} offen{NT}", "wq")
        if j < 7: a(f"s_add_u32 s{sOffWQ}, s{sOffWQ}, 8192")
    base(S_KA, 6); base(S_KB, 16); base(S_VA, 8); base(S_VB, 18); base(S_OUT, 24)
    def load_tile(dst_is_a, dst, vo, vo2, srd_, soff, tag):
        for j in range(8):
            r = (ar if dst_is_a else vr)(dst + 4 * j)
            a.vmem(f"buffer_load_dwordx4 {r}, v{vo if j < 4 else vo2}, {srd(srd_)}, s{soff} offen offset:{(j & 3) * 1024}{NT}", tag)
    def load_KB(t):
        a(f"s_add_u32 s{sT0}, s{sOffB}, {t * 32768}")
        load_tile(True, 32 + 32 * t, vK, vK2, S_KB, sT0, f"KB{t}")
    def load_VB(t, buf):
        a(f"s_add_u32 s{sT0}, s{sOffB}, {t * 32768}")
        load_tile(False, VB[buf], vV, vV2, S_VB, sT0, f"VB{t}")
    load_tile(True, 0, vK, vK2, S_KA, sOffA, "KA")
    load_KB(0)
    a(f"s_bfe_u32 s{sT0}, s{sIDX}, 0x20002"); a(f"s_lshl_b32 s{sT1}, s{sKVH}, 2"); a(f"s_add_u32 s{sT0}, s{sT0}, s{sT1}")
    a(f"s_lshl_b32 s{sT0}, s{sT0}, 2"); a(f"s_and_b32 s{sT1}, s{sIDX}, 3"); a(f"s_add_u32 s{sT0}, s{sT0}, s{sT1}")
    a(f"s_lshl_b32 s{sOffWO}, s{sT0}, 15"); a(f"s_lshl_b32 s{sT1}, s{sW}, 8"); a(f"s_add_u32 s{sOffWO}, s{sOffWO}, s{sT1}")
    a(f"s_lshl_b32 s{sT1}, s{sB}, 7"); a(f"s_add_u32 s{sT0}, s{sT0}, s{sT1}"); a(f"s_lshl_b32 s{sT0}, s{sT0}, 12")
    a(f"s_add_u32 s{sPOcon}, s{sT0}, {POOFF}")
    a(f"s_lshl_b32 s{sT1}, s{sW}, 9"); a(f"s_add_u32 s{sOPpub}, s{sT0}, s{sT1}"); a(f"s_add_u32 s{sOPpub}, s{sOPpub}, {OPOFF}")
    a(f"s_lshl_b32 s{sT0}, s{sB}, 3"); a(f"s_add_u32 s{sT0}, s{sT0}, s{sKVH}"); a(f"s_lshl_b32 s{sT0}, s{sT0}, 1")
    a(f"s_lshr_b32 s{sT1}, s{sW}, 1"); a(f"s_add_u32 s{sT0}, s{sT0}, s{sT1}"); a(f"s_lshl_b32 s{sT0}, s{sT0}, 1")
    a(f"s_and_b32 s{sT1}, s{sIDX}, 1"); a(f"s_add_u32 s{sT0}, s{sT0}, s{sT1}"); a(f"s_lshl_b32 s{sT0}, s{sT0}, 11")
    a(f"s_bfe_u32 s{sT1}, s{sIDX}, 0x30001"); a(f"s_lshl_b32 s{sT1}, s{sT1}, 8"); a(f"s_add_u32 s{sT0}, s{sT0}, s{sT1}")
    a(f"s_and_b32 s{sT1}, s{sW}, 1"); a(f"s_lshl_b32 s{sT1}, s{sT1}, 7"); a(f"s_add_u32 s{sT0}, s{sT0}, s{sT1}"); a(f"s_add_u32 s{sQpub}, s{sT0}, {QOFF}")
    a(f"s_lshr_b32 s{sT0}, s{sW}, 1"); a(f"s_lshl_b32 s{sT0}, s{sT0}, 3"); a(f"s_add_u32 s{sT0}, s{sT0}, s{sKVH}"); a(f"s_lshl_b32 s{sT0}, s{sT0}, 1")
    a(f"s_add_u32 s{sT0}, s{sT0}, s{sB}"); a(f"s_lshl_b32 s{sT0}, s{sT0}, 12")
    a(f"s_and_b32 s{sT1}, s{sW}, 1"); a(f"s_lshl_b32 s{sT1}, s{sT1}, 10"); a(f"s_add_u32 s{sT0}, s{sT0}, s{sT1}"); a(f"s_add_u32 s{sQcon}, s{sT0}, {QOFF}")
    a(f"s_lshl_b32 s{sT0}, s{sB}, 3"); a(f"s_add_u32 s{sT0}, s{sT0}, s{sKVH}"); a(f"s_lshl_b32 s{sT0}, s{sT0}, 10")
    a(f"s_add_u32 s{sPLconA}, s{sT0}, {PLOFF}"); a(f"s_add_u32 s{sPLconB}, s{sT0}, {PLOFF + 16384}")
    a(f"s_lshl_b32 s{sT0}, s{sW}, 8"); a(f"s_lshl_b32 s{sT1}, s{sC}, 4"); a(f"s_add_u32 s{sT0}, s{sT0}, s{sT1}")
    a(f"s_add_u32 s{sPLpubA}, s{sPLconA}, s{sT0}"); a(f"s_add_u32 s{sPLpubB}, s{sPLconB}, s{sT0}")
    a(f"s_lshl_b32 s{sT0}, s{sKVH}, 2"); a(f"s_add_u32 s{sT0}, s{sT0}, s{sW}"); a(f"s_lshl_b32 s{sT0}, s{sT0}, 14")
    a(f"s_lshl_b32 s{sT1}, s{sIDX}, 7"); a(f"s_add_u32 s{sT0}, s{sT0}, s{sT1}")
    a(f"s_add_u32 s{sPOpubA}, s{sT0}, {POOFF}"); a(f"s_add_u32 s{sPOpubB}, s{sT0}, {POOFF + 0x80000}")
    a.wait_vm("wq")
    stamp()
    a(f"v_readfirstlane_b32 s{sT0}, v{vE}")
    a(f"s_mul_i32 s{sTAG}, s{sT0}, 0x9E3779B1"); a(f"s_add_u32 s{sTAG}, s{sTAG}, 0x85EBCA6B")
    def transpose_mfma(raw, Areg, Dbase, first, Tb=TT):
        def perms(d):
            tb = Tb + 8 * (d & 1)
            for p in range(4):
                a(f"v_perm_b32 v{tb + p}, v{raw + 8*p + 4 + d}, v{raw + 8*p + d}, s{sSelLo}")
                a(f"v_perm_b32 v{tb + 4 + p}, v{raw + 8*p + 4 + d}, v{raw + 8*p + d}, s{sSelHi}")
        def mf(d):
            tb = Tb + 8 * (d & 1)
            for k in range(2):
                i = 2 * d + k
                c = "0" if first else vr(Dbase + 4 * i)
                a(f"v_mfma_f32_16x16x32_bf16 {vr(Dbase + 4*i)}, {Areg}, {vr(tb + 4*k)}, {c}")
        perms(0)
        for d in range(1, 4):
            perms(d); mf(d - 1)
        a("s_nop 1"); mf(3)
    transpose_mfma(S0, vr(XF), DT, True)
    a(f"v_lshrrev_b32 v{vT0}, 4, v{vLane}"); a(f"v_lshlrev_b32 v{vT0}, 8, v{vT0}")
    a(f"v_and_b32 v{vT1}, 7, v{vLane}"); a(f"v_lshl_add_u32 v{vT0}, v{vT1}, 5, v{vT0}")
    a(f"s_lshl_b32 s{sT0}, s{sW}, 9"); a(f"v_add_u32 v{vT0}, s{sT0}, v{vT0}")
    a(f"s_lshr_b32 s{sT0}, s{sW}, 1"); a(f"s_lshl_b32 s{sT0}, s{sT0}, 8"); a(f"s_and_b32 s{sT1}, s{sW}, 1"); a(f"s_lshl_b32 s{sT1}, s{sT1}, 7"); a(f"s_add_u32 s{sT0}, s{sT0}, s{sT1}")
    a(f"v_lshlrev_b32 v{vT2}, 4, v{vT1}"); a(f"v_add_u32 v{vT1}, s{sT0}, v{vT2}")
    for i in range(8):
        a(f"v_add_f32_dpp v{TT + i}, v{DT + 4*i + 1}, v{DT + 4*i} row_ror:8 row_mask:0xf bank_mask:0xf")
    a("s_mov_b64 exec, 0x00ff00ff")
    a(f"ds_write_b128 v{vT0}, {vr(TT)} offset:{L_RQ}"); a(f"ds_write_b128 v{vT0}, {vr(TT + 4)} offset:{L_RQ + 16}")
    a("s_mov_b64 exec, -1")
    a("s_waitcnt lgkmcnt(0)"); a("s_barrier")
    for k in range(4):
        a(f"ds_read_b128 {vr(DT + 4*k)}, v{vT1} offset:{L_RQ + 512*k}")
    a("s_waitcnt lgkmcnt(0)")
    def sum4(dst, b0, b1, b2, b3):
        for e in range(4): a(f"v_add_f32 v{dst + e}, v{b0 + e}, v{b1 + e}")
        for e in range(4): a(f"v_add_f32 v{b2 + e}, v{b2 + e}, v{b3 + e}")
        for e in range(4): a(f"v_add_f32 v{dst + e}, v{dst + e}, v{b2 + e}")
    def pack24(dst, x0, x1, x2, x3):
        a(f"v_perm_b32 v{dst}, v{x0}, v{x1}, s{sPk0}")
        a(f"v_perm_b32 v{dst + 1}, v{x2}, v{x1}, s{sPk1}")
        a(f"v_perm_b32 v{dst + 2}, v{x3}, v{x1}, s{sPk2}")
        a(f"v_mov_b32 v{dst + 3}, s{sTAG}")
    def unpack_x1(dst, g):
        a(f"v_perm_b32 v{dst}, v{g + 2}, v{g + 1}, s{sUn0}")
        a(f"v_perm_b32 v{dst}, v{dst}, v{g}, s{sUn1}")
    sum4(TT, DT, DT + 4, DT + 8, DT + 12)
    pack24(TT + 4, TT, TT + 1, TT + 2, TT + 3)
    a("s_mov_b64 exec, 0xff")
    a.vmem(f"buffer_store_dwordx4 {vr(TT + 4)}, v{vT2}, {srd(S_WS)}, s{sQpub} offen sc1", "stQ")
    a("s_mov_b64 exec, -1")
    stamp()
    for t in (1, 2, 3): load_KB(t)
    def qpoll():
        a.vmem(f"buffer_load_dwordx4 {vr(TT + 8)}, v{vV}, {srd(S_WS)}, s{sQcon} offen sc1", "Qp")
        a.vmem(f"buffer_load_dwordx4 {vr(TT + 12)}, v{vV}, {srd(S_WS)}, s{sQcon} offen offset:2048 sc1", "Qp")
    qpoll()
    load_tile(False, VB[0], vV, vV2, S_VA, sOffA, "VA")
    load_VB(0, 1)
    a.wait_vm("Qp")
    stamp()
    def tagcheck(regs, lab_retry, lab_ok, repoll, cnt_limit=spin):
        a(f"s_mov_b32 s{sCnt}, 0")
        a.label(lab_retry)
        a(f"v_xor_b32 v{vT4}, s{sTAG}, v{regs[0]}")
        for r in regs[1:]:
            a(f"v_xor_b32 v{vT3}, s{sTAG}, v{r}"); a(f"v_or_b32 v{vT4}, v{vT4}, v{vT3}")
        a(f"v_cmp_ne_u32 vcc, 0, v{vT4}")
        a("s_cmp_eq_u64 vcc, 0"); a(f"s_cbranch_scc1 {lab_ok}")
        a(f"s_add_u32 s{sCnt}, s{sCnt}, 1"); a(f"s_cmp_gt_u32 s{sCnt}, {cnt_limit}"); a(f"s_cbranch_scc1 {lab_ok}")
        saved = list(a.vm)
        repoll(); a("s_waitcnt vmcnt(0)")
        a.vm = saved
        a(f"s_branch {lab_retry}")
        a.label(lab_ok)
    tagcheck([TT + 11, TT + 15], "L_q_retry", "L_q_ok", qpoll)
    unpack_x1(TT, TT + 8); unpack_x1(TT + 1, TT + 12)
    a(f"v_add_f32 v{TT + 2}, v{TT + 8}, v{TT + 12}")
    a(f"v_add_f32 v{TT + 3}, v{TT}, v{TT + 1}")
    a(f"v_add_f32 v{TT + 4}, v{TT + 9}, v{TT + 13}")
    a(f"v_add_f32 v{TT + 5}, v{TT + 10}, v{TT + 14}")
    a(f"v_cvt_pk_bf16_f32 v{TT + 6}, v{TT + 2}, v{TT + 3}"); a(f"v_cvt_pk_bf16_f32 v{TT + 7}, v{TT + 4}, v{TT + 5}")
    a(f"s_lshl_b32 s{sT0}, s{sW}, 9")
    a(f"v_lshlrev_b32 v{vT0}, 3, v{vLane}"); a(f"v_add_u32 v{vT0}, s{sT0}, v{vT0}")
    a(f"ds_write_b64 v{vT0}, {vr(TT + 6, 2)} offset:{L_QL}")
    a("s_waitcnt lgkmcnt(0)"); a("s_barrier")
    a(f"ds_read_b128 {vr(QA)}, v{vK} offset:{L_QL}"); a(f"ds_read_b128 {vr(QB)}, v{vK} offset:{L_QL + 1024}")
    a("s_waitcnt lgkmcnt(0)")
    stamp()
    halves = []
    for t in range(5):
        for hf in range(2): halves.append((t, hf))
    def qk_mfma(n):
        t, hf = halves[n]
        q = QA if t == 0 else QB
        return [f"v_mfma_f32_16x16x32_bf16 {vr(DT + 16*(n & 1) + 4*k)}, {ar(32*t + 4*(4*hf + k))}, {vr(q)}, 0" for k in range(4)]
    def qk_dpp(n):
        t, hf = halves[n]
        d = DT + 16 * (n & 1)
        s = S0 + 8 * t + 4 * hf
        o = []
        for step, perm in ((1, "[1,2,3,0]"), (2, "[2,3,0,1]"), (3, "[3,0,1,2]")):
            for k in range(4):
                src1 = d + 4 * k if step == 1 else s + k
                o.append(f"v_add_f32_dpp v{s + k}, v{d + 4*k + step}, v{src1} quad_perm:{perm} row_mask:0xf bank_mask:0xf")
        return o
    for i in qk_mfma(0): a(i)
    for n in range(1, 10):
        m = qk_mfma(n); dp = qk_dpp(n - 1)
        for k in range(4):
            a(m[k])
            for i in dp[3*k:3*k + 3]: a(i)
        if n == 2: load_VB(1, 2)
    for i in qk_dpp(9): a(i)
    stamp()
    def xrow_reduce(reg, op):
        a(f"v_mov_b32 v{vT0}, v{reg}"); a(f"v_permlane16_swap_b32 v{reg}, v{vT0}"); a(f"{op} v{reg}, v{reg}, v{vT0}")
        a(f"v_mov_b32 v{vT0}, v{reg}"); a(f"v_permlane32_swap_b32 v{reg}, v{vT0}"); a(f"{op} v{reg}, v{reg}, v{vT0}")
    def softmax(sbase, n, mreg, lreg):
        a(f"v_max3_f32 v{mreg}, v{sbase}, v{sbase + 1}, v{sbase + 2}")
        i = 3
        while i + 1 < n:
            a(f"v_max3_f32 v{mreg}, v{mreg}, v{sbase + i}, v{sbase + i + 1}"); i += 2
        if i < n: a(f"v_max_f32 v{mreg}, v{mreg}, v{sbase + i}")
        xrow_reduce(mreg, "v_max_f32")
        a(f"v_mul_f32 v{mreg}, s{sSC}, v{mreg}")
        for i in range(n): a(f"v_fma_f32 v{sbase + i}, v{sbase + i}, s{sSC}, -v{mreg}")
        for i in range(n): a(f"v_exp_f32 v{sbase + i}, v{sbase + i}")
        a(f"v_add_f32 v{lreg}, v{sbase}, v{sbase + 1}")
        for i in range(2, n): a(f"v_add_f32 v{lreg}, v{lreg}, v{sbase + i}")
        for t in range(n // 8):
            for k in range(4):
                a(f"v_cvt_pk_bf16_f32 v{sbase + 8*t + k}, v{sbase + 8*t + 2*k}, v{sbase + 8*t + 2*k + 1}")
        xrow_reduce(lreg, "v_add_f32")
    softmax(S0, 8, MS, MS + 1)
    softmax(S0 + 8, 32, MS + 2, MS + 3)
    a(f"v_lshlrev_b32 v{vT0}, 3, v{vLane}")
    a(f"s_lshl_b32 s{sT0}, s{sW}, 3"); a(f"v_add_u32 v{vT0}, s{sT0}, v{vT0}")
    a("s_mov_b64 exec, 0x1111")
    a(f"ds_write_b64 v{vT0}, {vr(MS, 2)} offset:{L_ML}"); a(f"ds_write_b64 v{vT0}, {vr(MS + 2, 2)} offset:{L_ML + 128}")
    a("s_mov_b64 exec, -1")
    a("s_waitcnt lgkmcnt(0)"); a("s_barrier")
    a(f"v_lshrrev_b32 v{vT0}, 4, v{vLane}"); a(f"v_lshlrev_b32 v{vT0}, 5, v{vT0}")
    a(f"v_add_u32 v{vT1}, s{sT0}, v{vT0}")
    a(f"ds_read_b128 {vr(TT)}, v{vT0} offset:{L_ML}"); a(f"ds_read_b128 {vr(TT + 4)}, v{vT0} offset:{L_ML + 16}")
    a(f"ds_read_b128 {vr(TT + 8)}, v{vT0} offset:{L_ML + 128}"); a(f"ds_read_b128 {vr(TT + 12)}, v{vT0} offset:{L_ML + 128 + 16}")
    a(f"ds_read_b32 v{MS}, v{vT1} offset:{L_ML}"); a(f"ds_read_b32 v{MS + 1}, v{vT1} offset:{L_ML + 128}")
    load_VB(2, 3)
    a("s_waitcnt lgkmcnt(0)")
    def wg_lse(b, dst):
        a(f"v_max3_f32 v{vT2}, v{b}, v{b + 2}, v{b + 4}"); a(f"v_max_f32 v{vT2}, v{vT2}, v{b + 6}")
        for k in range(4): a(f"v_sub_f32 v{b + 2*k}, v{b + 2*k}, v{vT2}")
        for k in range(4): a(f"v_exp_f32 v{b + 2*k}, v{b + 2*k}")
        a(f"v_mul_f32 v{vT3}, v{b}, v{b + 1}")
        for k in range(1, 4): a(f"v_fma_f32 v{vT3}, v{b + 2*k}, v{b + 2*k + 1}, v{vT3}")
        a(f"v_log_f32 v{vT3}, v{vT3}")
        a(f"v_add_f32 v{dst}, v{vT2}, v{vT3}")
    wg_lse(TT, TT); wg_lse(TT + 8, TT + 8)
    a(f"v_mov_b32 v{TT + 3}, s{sTAG}"); a(f"v_mov_b32 v{TT + 11}, s{sTAG}")
    a(f"s_lshl_b32 s{sT0}, s{sW}, 4"); a(f"s_lshl_b64 exec, 1, s{sT0}")
    a.vmem(f"buffer_store_dwordx4 {vr(TT)}, off, {srd(S_WS)}, s{sPLpubA} sc1", "stL")
    a.vmem(f"buffer_store_dwordx4 {vr(TT + 8)}, off, {srd(S_WS)}, s{sPLpubB} sc1", "stL")
    a("s_mov_b64 exec, -1")
    stamp()
    a.wait_vm("VA")
    transpose_mfma(VB[0], vr(S0), DT, True)
    for i in range(8): a(f"v_mov_b32 v{OA + i}, v{DT + 4*i}")
    LP = XF
    def lpoll():
        a.vmem(f"buffer_load_dwordx4 {vr(XF)}, v{vV}, {srd(S_WS)}, s{sPLconA} offen sc1", "Lp")
        a.vmem(f"buffer_load_dwordx4 {vr(QA)}, v{vV}, {srd(S_WS)}, s{sPLconB} offen sc1", "Lp")
    lpoll()
    load_VB(3, 0)
    a.wait_vm("VB0")
    transpose_mfma(VB[1], vr(S0 + 8), DT, True)
    for j in range(8):
        a.vmem(f"buffer_load_dwordx4 {vr(VB[1] + 4*j)}, v{vWO if j < 4 else vWO2}, {srd(S_WO)}, s{sOffWO} offen offset:{(j & 3) * 1024}{NT}", "wo")
    a.wait_vm("VB1")
    transpose_mfma(VB[2], vr(S0 + 16), DT, False)
    stamp()
    a.wait_vm("Lp")
    tagcheck([XF + 3, QA + 3], "L_l_retry", "L_l_ok", lpoll)
    for r in (XF, QA):
        a(f"v_mov_b32 v{r + 1}, v{r}")
    for sh in (8, 4, 2, 1):
        for r in (XF, QA):
            a(f"v_max_f32_dpp v{r + 2}, v{r + 1}, v{r + 1} row_ror:{sh} row_mask:0xf bank_mask:0xf")
        for r in (XF, QA):
            a(f"v_mov_b32 v{r + 1}, v{r + 2}")
    for r in (XF, QA): a(f"v_sub_f32 v{r}, v{r}, v{r + 1}")
    for r in (XF, QA): a(f"v_exp_f32 v{r}, v{r}")
    for sh in (8, 4, 2, 1):
        for r in (XF, QA):
            a(f"v_add_f32_dpp v{r + 2}, v{r}, v{r} row_ror:{sh} row_mask:0xf bank_mask:0xf")
        for r in (XF, QA):
            a(f"v_mov_b32 v{r}, v{r + 2}")
    for r in (XF, QA): a(f"v_log_f32 v{r}, v{r}")
    for r in (XF, QA): a(f"v_add_f32 v{r}, v{r}, v{r + 1}")
    a(f"v_sub_f32 v{MS}, v{MS}, v{XF}"); a(f"v_sub_f32 v{MS + 1}, v{MS + 1}, v{QA}")
    a(f"v_exp_f32 v{MS}, v{MS}"); a(f"v_exp_f32 v{MS + 1}, v{MS + 1}")
    a(f"v_lshlrev_b32 v{vLds}, 5, v{vLane}"); a(f"s_lshl_b32 s{sT0}, s{sW}, 11"); a(f"v_add_u32 v{vLds}, s{sT0}, v{vLds}")
    a(f"v_and_b32 v{vT0}, 31, v{vLane}"); a(f"v_lshlrev_b32 v{vT1}, 4, v{vT0}"); a(f"s_lshl_b32 s{sT0}, s{sW}, 9"); a(f"v_add_u32 v{vK}, s{sT0}, v{vT1}")
    a(f"v_lshrrev_b32 v{vT1}, 3, v{vT0}"); a(f"v_lshlrev_b32 v{vK2}, 12, v{vT1}"); a(f"v_and_b32 v{vT1}, 7, v{vT0}"); a(f"v_lshl_add_u32 v{vK2}, v{vT1}, 4, v{vK2}")
    def publish(src_regs, creg, lreg_off, spub, tag):
        for i in range(8): a(f"v_mul_f32 v{TT + i}, v{src_regs[i]}, v{creg}")
        a(f"ds_write_b128 v{vLds}, {vr(TT)} offset:{lreg_off}"); a(f"ds_write_b128 v{vLds}, {vr(TT + 4)} offset:{lreg_off + 16}")
        a("s_waitcnt lgkmcnt(0)"); a("s_barrier")
        for k in range(4):
            a(f"ds_read_b128 {vr(TT + 4*k)}, v{vK} offset:{lreg_off + 2048*k}")
        a("s_waitcnt lgkmcnt(0)")
        sum4(TT, TT, TT + 4, TT + 8, TT + 12)
        pack24(TT + 4, TT, TT + 1, TT + 2, TT + 3)
        a("s_mov_b32 exec_hi, 0")
        a.vmem(f"buffer_store_dwordx4 {vr(TT + 4)}, v{vK2}, {srd(S_WS)}, s{spub} offen sc1", tag)
        a("s_mov_b64 exec, -1")
    publish([OA + i for i in range(8)], MS, L_RA, sPOpubA, "stA")
    stamp()
    a.wait_vm("VB2")
    transpose_mfma(VB[3], vr(S0 + 24), DT, False)
    a.wait_vm("VB3")
    stamp()
    transpose_mfma(VB[0], vr(S0 + 32), DT, False)
    publish([DT + 4*i for i in range(8)], MS + 1, L_RB, sPOpubB, "stB")
    stamp()
    a(f"v_lshrrev_b32 v{vT0}, 5, v{vLane}"); a(f"v_lshlrev_b32 v{vV}, 11, v{vT0}"); a(f"v_and_b32 v{vT0}, 31, v{vLane}"); a(f"v_lshl_add_u32 v{vV}, v{vT0}, 4, v{vV}")
    H2 = S0
    def h2poll():
        for n in range(4):
            a.vmem(f"buffer_load_dwordx4 {vr(H2 + 4*n)}, v{vV}, {srd(S_WS)}, s{sPOcon} offen offset:{512*n} sc1", "H2")
    a(f"s_cmp_eq_u32 s{sW}, 0"); a("s_cbranch_scc0 L_s2_skip1")
    saved = list(a.vm)
    h2poll()
    a.vm = saved
    a.label("L_s2_skip1")
    a(f"s_cmp_eq_u32 s{sW}, 0"); a("s_cbranch_scc1 L_s2_w0")
    a("s_waitcnt vmcnt(1)"); a("s_branch L_s2_wj")
    a.label("L_s2_w0"); a("s_waitcnt vmcnt(5)")
    a.label("L_s2_wj")
    a.vm = []
    WT = VB[2]
    for d in range(4):
        for p in range(4):
            a(f"v_perm_b32 v{WT + 8*d + p}, v{VB[1] + 8*p + 4 + d}, v{VB[1] + 8*p + d}, s{sSelLo}")
            a(f"v_perm_b32 v{WT + 8*d + 4 + p}, v{VB[1] + 8*p + 4 + d}, v{VB[1] + 8*p + d}, s{sSelHi}")
    stamp()
    a(f"s_cmp_eq_u32 s{sW}, 0"); a("s_cbranch_scc0 L_s2_join")
    a("s_waitcnt vmcnt(0)")
    tagcheck([H2 + 3, H2 + 7, H2 + 11, H2 + 15], "L_h2_retry", "L_h2_ok", h2poll)
    a.vm = []
    for n in range(4): unpack_x1(H2 + 4*n + 3, H2 + 4*n)
    sum4(H2, H2, H2 + 4, H2 + 8, H2 + 12)
    for e in range(4): a(f"v_add_f32_dpp v{H2 + 4 + e}, v{H2 + e}, v{H2 + e} row_ror:8 row_mask:0xf bank_mask:0xf")
    a(f"v_permlane16_swap_b32 v{H2 + 4}, v{H2 + 5}"); a(f"v_permlane16_swap_b32 v{H2 + 7}, v{H2 + 6}")
    a(f"v_add_f32 v{H2 + 4}, v{H2 + 4}, v{H2 + 5}"); a(f"v_add_f32 v{H2 + 7}, v{H2 + 7}, v{H2 + 6}")
    a(f"v_cvt_pk_bf16_f32 v{H2}, v{H2 + 4}, v{H2 + 7}")
    a(f"v_lshrrev_b32 v{vT0}, 5, v{vLane}"); a(f"v_lshlrev_b32 v{vT0}, 6, v{vT0}"); a(f"v_and_b32 v{vT1}, 7, v{vLane}"); a(f"v_lshl_add_u32 v{vT0}, v{vT1}, 3, v{vT0}")
    a(f"v_bfe_u32 v{vT1}, v{vLane}, 4, 1"); a(f"v_lshl_add_u32 v{vT0}, v{vT1}, 2, v{vT0}")
    a(f"ds_write_b32 v{vT0}, v{H2} offset:{L_O2}")
    a("s_waitcnt lgkmcnt(0)")
    a.label("L_s2_join")
    a("s_barrier")
    stamp()
    a(f"v_bfe_u32 v{vT0}, v{vLane}, 2, 1"); a(f"v_lshlrev_b32 v{vT0}, 6, v{vT0}"); a(f"v_lshrrev_b32 v{vT1}, 4, v{vLane}"); a(f"v_lshl_add_u32 v{vT0}, v{vT1}, 4, v{vT0}")
    a(f"ds_read_b128 {vr(XF)}, v{vT0} offset:{L_O2}")
    a(f"v_lshlrev_b32 v{vK}, 11, v{vT1}"); a(f"v_and_b32 v{vT1}, 15, v{vLane}"); a(f"v_lshl_add_u32 v{vK}, v{vT1}, 4, v{vK}")
    a("s_waitcnt lgkmcnt(0)")
    for i in range(8):
        a(f"v_mfma_f32_16x16x32_bf16 {vr(DT + 4*i)}, {vr(XF)}, {vr(WT + 4*i)}, 0")
    pack24(TT, DT, DT + 4, DT + 8, DT + 12)
    pack24(TT + 4, DT + 16, DT + 20, DT + 24, DT + 28)
    a("s_mov_b32 exec_hi, 0")
    a(f"buffer_store_dwordx4 {vr(TT)}, v{vK}, {srd(S_WS)}, s{sOPpub} offen sc1")
    a(f"buffer_store_dwordx4 {vr(TT + 4)}, v{vK}, {srd(S_WS)}, s{sOPpub} offen offset:256 sc1")
    a("s_mov_b64 exec, -1")
    stamp()
    a(f"s_cmp_eq_u32 s{sW}, 0"); a("s_cbranch_scc0 L_fin")
    a(f"s_lshl_b32 s{sT0}, s{sKVH}, 1"); a(f"s_add_u32 s{sT0}, s{sT0}, s{sB}")
    a(f"s_lshr_b32 s{sT1}, s{sT0}, 3"); a(f"s_lshl_b32 s{sT2}, s{sT1}, 19")
    a(f"s_and_b32 s{sT3}, s{sT0}, 7"); a(f"s_lshl_b32 s{sT3}, s{sT3}, 9"); a(f"s_add_u32 s{sT2}, s{sT2}, s{sT3}")
    a(f"s_lshl_b32 s{sT3}, s{sC}, 4"); a(f"s_add_u32 s{sT2}, s{sT2}, s{sT3}"); a(f"s_add_u32 s{sPOcon}, s{sT2}, {OPOFF}")
    a(f"s_add_u32 s{sPOpubA}, s{sPOcon}, {131072}"); a(f"s_add_u32 s{sPOpubB}, s{sPOcon}, {2*131072}"); a(f"s_add_u32 s{sOPpub}, s{sPOcon}, {3*131072}")
    a(f"s_bfe_u32 s{sT2}, s{sT0}, 0x10002"); a(f"s_lshl_b32 s{sT2}, s{sT2}, 11"); a(f"s_lshl_b32 s{sT1}, s{sT1}, 10"); a(f"s_add_u32 s{sT2}, s{sT2}, s{sT1}")
    a(f"s_and_b32 s{sT1}, s{sT0}, 3"); a(f"s_lshl_b32 s{sT1}, s{sT1}, 8"); a(f"s_add_u32 s{sT2}, s{sT2}, s{sT1}"); a(f"s_add_u32 s{sQpub}, s{sT2}, s{sT3}")
    a(f"v_lshrrev_b32 v{vT0}, 1, v{vLane}"); a(f"v_lshlrev_b32 v{vV}, 12, v{vT0}"); a(f"v_and_b32 v{vT0}, 1, v{vLane}"); a(f"v_lshl_add_u32 v{vV}, v{vT0}, 8, v{vV}")
    a(f"v_lshlrev_b32 v{vK2}, 3, v{vT0}"); a(f"v_lshrrev_b32 v{vT0}, 4, v{vLane}"); a(f"v_lshl_add_u32 v{vK2}, v{vT0}, 1, v{vK2}")
    def h3poll():
        for n, so in enumerate((sPOcon, sPOpubA, sPOpubB, sOPpub)):
            a.vmem(f"buffer_load_dwordx4 {vr(H2 + 4*n)}, v{vV}, {srd(S_WS)}, s{so} offen sc1", "H3")
    h3poll()
    a("s_waitcnt vmcnt(0)")
    tagcheck([H2 + 3, H2 + 7, H2 + 11, H2 + 15], "L_h3_retry", "L_h3_ok", h3poll)
    stamp()
    for n in range(4): unpack_x1(H2 + 4*n + 3, H2 + 4*n)
    sum4(H2, H2, H2 + 4, H2 + 8, H2 + 12)
    a(f"v_permlane16_swap_b32 v{H2}, v{H2 + 3}"); a(f"v_permlane16_swap_b32 v{H2 + 1}, v{H2 + 2}")
    a(f"v_add_f32 v{H2}, v{H2}, v{H2 + 3}"); a(f"v_add_f32 v{H2 + 1}, v{H2 + 1}, v{H2 + 2}")
    a(f"v_permlane32_swap_b32 v{H2}, v{H2 + 1}")
    a(f"v_add_f32 v{H2}, v{H2}, v{H2 + 1}")
    for sh in (2, 4, 8):
        a(f"v_add_f32_dpp v{H2 + 1}, v{H2}, v{H2} row_ror:{sh} row_mask:0xf bank_mask:0xf"); a(f"v_mov_b32 v{H2}, v{H2 + 1}")
    a(f"v_cvt_pk_bf16_f32 v{H2}, v{H2}, v{H2}")
    a("s_mov_b32 exec_lo, 0x00030003"); a("s_mov_b32 exec_hi, 0x00030003")
    a(f"buffer_store_short v{H2}, v{vK2}, {srd(S_OUT)}, s{sQpub} offen")
    a("s_mov_b64 exec, -1")
    a("s_cmp_eq_u32 s2, 0"); a("s_cbranch_scc0 L_fin")
    a(f"v_mov_b32 v{vT0}, s{sTAG}")
    a("s_mov_b64 exec, 1")
    a(f"buffer_store_dword v{vT0}, off, {srd(S_WS)}, 0 offset:{EPOCH} sc1")
    a("s_mov_b64 exec, -1")
    a.label("L_fin")
    if stamps:
        stamp()
        a(f"s_lshl_b32 s{sT0}, s2, 2"); a(f"s_add_u32 s{sT0}, s{sT0}, s{sW}"); a(f"s_lshl_b32 s{sT0}, s{sT0}, 8"); a(f"s_add_u32 s{sT0}, s{sT0}, {STAMP}")
        a("s_getreg_b32 s100, hwreg(HW_REG_XCC_ID)"); a("v_writelane_b32 v0, s100, 63")
        a(f"v_lshlrev_b32 v{vT0}, 2, v{vLane}")
        a(f"buffer_store_dword v0, v{vT0}, {srd(S_WS)}, s{sT0} offen")
    a.label("L_end")
    a("s_endpgm")
    body = a.finalize()
    head = f"""; Fused two-branch GQA decode: q projection, split-KV attention, output projection in one launch.
; @launch grid=(256,1,1) block=(256,1,1) lds={L_END}
.amdgcn_target "amdgcn-amd-amdhsa--gfx950"
.text
.globl {KN}
.p2align 8
.type {KN},@function
{KN}:
"""
    tail = f""".section .rodata,"a"
.p2align 6
.amdhsa_kernel {KN}
  .amdhsa_next_free_vgpr 416
  .amdhsa_next_free_sgpr 102
  .amdhsa_accum_offset 256
  .amdhsa_group_segment_fixed_size 0
  .amdhsa_kernarg_size 104
  .amdhsa_user_sgpr_count 2
  .amdhsa_user_sgpr_kernarg_segment_ptr 1
  .amdhsa_system_sgpr_workgroup_id_x 1
.end_amdhsa_kernel
"""
    return head + body + tail, a.nops, nstamp[0]

if __name__ == "__main__":
    txt, nops, ns = gen(stamps=False)
    open("k_main.s", "w").write(txt)
    print("main: lines", txt.count("\n"), "nops", nops)
    txt, nops, ns = gen(stamps=True)
    open("k_stamp.s", "w").write(txt)
    print("stamp: nstamps", ns)
```

```python
import sys
from asmlib import Asm

KN = "concat_heads__sliding_block_cached__gqa_block_cached__decode_kernel"

EPOCH = 0x0
QOFF  = 0x10000
PLOFF = 0x30000
POOFF = 0x40000
OPOFF = 0x140000
WSEND = 0x240000
STAMP = 0x300000
L_RQ, L_QL, L_ML, L_O2, L_RA, L_RB, L_END = 0, 2048, 4096, 4352, 8192, 16384, 24576

S_WS, S_KA, S_VA, S_KB, S_VB, S_WQ, S_WO, S_X, S_OUT = 28, 32, 36, 40, 44, 48, 52, 56, 60
sW, sKVH, sIDX, sB, sC, sTAG, sOffA, sOffB, sOffWQ, sOffWO = 64, 65, 66, 67, 68, 69, 70, 71, 72, 73
sT0, sT1, sT2, sT3 = 74, 75, 76, 77
sSelLo, sSelHi, sPk0, sPk1, sPk2, sUn0, sUn1, sSC = 80, 81, 82, 83, 84, 85, 86, 87
sCnt = 88
sQpub, sQcon, sPLpubA, sPLpubB, sPLconA, sPLconB, sPOpubA, sPOpubB, sPOcon, sOPpub = 89, 90, 91, 92, 93, 94, 95, 96, 97, 98
sStamp = 3
vLane, vK, vK2, vV, vV2, vWQ, vT0, vT1, vT2, vT3, vE, vWO, vWO2, vLds, vT4 = 1, 2, 3, 4, 5, 6, 7, 8, 9, 10, 11, 12, 13, 14, 15
QA, QB = 16, 20
S0 = 24
DT = 64
TT = 96
XF = 112
OA = 116
MS = 124
VB = [128, 160, 192, 224]

def srd(i): return f"s[{i}:{i+3}]"
def vr(i, n=4): return f"v[{i}:{i+n-1}]"
def ar(i, n=4): return f"a[{i}:{i+n-1}]"

def gen(stamps=False, nt=True, code_prefetch=False, spin=60000, dbg=False):
    a = Asm()
    NT = " nt" if nt else ""
    nstamp = [0]
    def stamp():
        if stamps:
            i = nstamp[0]; nstamp[0] += 1
            a(f"s_memrealtime s[100:101]")
            a(f"s_waitcnt lgkmcnt(0)")
            a(f"v_writelane_b32 v0, s100, {i}")
    a("s_cmp_ge_u32 s2, 256"); a("s_cbranch_scc1 L_end")
    a("s_load_dwordx16 s[4:19], s[0:1], 0")
    a("s_load_dwordx4 s[20:23], s[0:1], 64")
    a("s_load_dwordx2 s[24:25], s[0:1], 80")
    a("s_load_dwordx2 s[26:27], s[0:1], 96")
    if dbg: a("s_load_dwordx2 s[78:79], s[0:1], 88")
    if stamps:
        a("s_memrealtime s[100:101]")
    a("v_lshrrev_b32 v7, 6, v0")
    a(f"v_and_b32 v{vLane}, 63, v0")
    a(f"v_readfirstlane_b32 s{sW}, v7")
    a(f"s_and_b32 s{sKVH}, s2, 7"); a(f"s_lshr_b32 s{sIDX}, s2, 3"); a(f"s_lshr_b32 s{sB}, s{sIDX}, 4"); a(f"s_and_b32 s{sC}, s{sIDX}, 15")
    a(f"v_lshlrev_b32 v{vV}, 4, v{vLane}")
    a(f"v_add_u32 v{vV2}, 4096, v{vV}")
    a(f"v_lshrrev_b32 v{vT0}, 4, v{vLane}")
    a(f"v_and_b32 v{vT1}, 15, v{vLane}")
    a(f"v_bfe_u32 v{vT2}, v{vLane}, 2, 2")
    a(f"v_lshlrev_b32 v{vK}, 8, v{vT2}")
    a(f"v_lshl_add_u32 v{vK}, v{vT0}, 6, v{vK}")
    a(f"v_and_b32 v{vT2}, 3, v{vLane}")
    a(f"v_lshl_add_u32 v{vK}, v{vT2}, 4, v{vK}")
    a(f"v_add_u32 v{vK2}, 4096, v{vK}")
    a(f"v_lshrrev_b32 v{vT2}, 3, v{vLane}")
    a(f"v_lshlrev_b32 v{vWQ}, 16, v{vT2}")
    a(f"v_and_b32 v{vT2}, 7, v{vLane}")
    a(f"v_lshl_add_u32 v{vWQ}, v{vT2}, 4, v{vWQ}")
    a(f"v_bfe_u32 v{vT2}, v{vLane}, 2, 1")
    a(f"v_lshlrev_b32 v{vT3}, 10, v{vT2}")
    a(f"v_lshl_add_u32 v{vT3}, v{vT0}, 5, v{vT3}")
    a(f"v_and_b32 v{vT2}, 1, v{vLane}")
    a(f"v_lshl_add_u32 v{vT3}, v{vT2}, 4, v{vT3}")
    a(f"v_lshlrev_b32 v{vWO}, 13, v{vT0}")
    a(f"v_lshl_add_u32 v{vWO}, v{vT1}, 4, v{vWO}")
    a(f"v_add_u32 v{vWO2}, 4096, v{vWO}")
    a(f"s_lshl_b32 s{sT0}, s{sB}, 3"); a(f"s_add_u32 s{sT0}, s{sT0}, s{sKVH}"); a(f"s_lshl_b32 s{sT0}, s{sT0}, 21")
    a(f"s_lshl_b32 s{sT1}, s{sW}, 13"); a(f"s_add_u32 s{sT0}, s{sT0}, s{sT1}")
    a(f"s_lshl_b32 s{sT1}, s{sC}, 15"); a(f"s_add_u32 s{sOffA}, s{sT0}, s{sT1}"); a(f"s_add_u32 s{sOffA}, s{sOffA}, 0x180000")
    a(f"s_lshl_b32 s{sT1}, s{sC}, 17"); a(f"s_add_u32 s{sOffB}, s{sT0}, s{sT1}")
    a(f"s_and_b32 s{sT0}, s{sIDX}, 1"); a(f"s_lshl_b32 s{sT0}, s{sT0}, 2"); a(f"s_add_u32 s{sT0}, s{sT0}, s{sW}")
    a(f"s_lshl_b32 s{sT2}, s{sT0}, 7")
    a(f"s_lshl_b32 s{sOffWQ}, s{sT0}, 19")
    a(f"s_lshl_b32 s{sT1}, s{sKVH}, 10"); a(f"s_add_u32 s{sOffWQ}, s{sOffWQ}, s{sT1}")
    a(f"s_bfe_u32 s{sT1}, s{sIDX}, 0x30001"); a(f"s_lshl_b32 s{sT1}, s{sT1}, 7"); a(f"s_add_u32 s{sOffWQ}, s{sOffWQ}, s{sT1}")
    a(f"s_mov_b32 s{sSelLo}, 0x05040100"); a(f"s_mov_b32 s{sSelHi}, 0x07060302")
    a(f"s_mov_b32 s{sPk0}, 0x07060501"); a(f"s_mov_b32 s{sPk1}, 0x07060502"); a(f"s_mov_b32 s{sPk2}, 0x07060503")
    a(f"s_mov_b32 s{sUn0}, 0x04000c0c"); a(f"s_mov_b32 s{sUn1}, 0x0706000c")
    a(f"s_mov_b32 s{sSC}, 0x3e0293ee")
    for s_ in (S_WS, S_KA, S_VA, S_KB, S_VB, S_WQ, S_WO, S_X, S_OUT):
        a(f"s_mov_b32 s{s_+3}, 0x20000")
    a(f"s_mov_b32 s{S_WS+2}, {WSEND if not stamps else 0x400000}")
    for s_ in (S_KA, S_VA, S_KB, S_VB): a(f"s_mov_b32 s{s_+2}, 0x2000000")
    a(f"s_mov_b32 s{S_WQ+2}, 0x400000"); a(f"s_mov_b32 s{S_WO+2}, 0x400000"); a(f"s_mov_b32 s{S_X+2}, 2048"); a(f"s_mov_b32 s{S_OUT+2}, 4096")
    a("s_waitcnt lgkmcnt(0)")
    if stamps:
        a("v_mov_b32 v0, 0"); a("v_writelane_b32 v0, s100, 0"); nstamp[0] = 1
        a("s_memtime s[100:101]"); a("s_waitcnt lgkmcnt(0)"); a("v_writelane_b32 v0, s100, 60")
        a("s_memrealtime s[100:101]"); a("s_waitcnt lgkmcnt(0)"); a("v_writelane_b32 v0, s100, 58")
    def base(d, lo):
        a(f"s_mov_b32 s{d}, s{lo}"); a(f"s_and_b32 s{d+1}, s{lo+1}, 0xffff")
    base(S_WS, 26)
    a(f"s_cmp_eq_u32 s{sB}, 0")
    a(f"s_cselect_b32 s{S_WQ}, s10, s20"); a(f"s_cselect_b32 s{S_WQ+1}, s11, s21")
    a(f"s_cselect_b32 s{S_X}, s4, s14"); a(f"s_cselect_b32 s{S_X+1}, s5, s15")
    a(f"s_cselect_b32 s{S_WO}, s12, s22"); a(f"s_cselect_b32 s{S_WO+1}, s13, s23")
    a(f"s_and_b32 s{S_WQ+1}, s{S_WQ+1}, 0xffff"); a(f"s_and_b32 s{S_X+1}, s{S_X+1}, 0xffff"); a(f"s_and_b32 s{S_WO+1}, s{S_WO+1}, 0xffff")
    a.vmem(f"buffer_load_dword v{vE}, off, {srd(S_WS)}, 0 offset:{EPOCH} sc1", "E")
    a.vmem(f"buffer_load_dwordx4 {vr(XF)}, v{vT3}, {srd(S_X)}, s{sT2} offen", "x")
    for j in range(8):
        a.vmem(f"buffer_load_dwordx4 {vr(S0+4*j)}, v{vWQ}, {srd(S_WQ)}, s{sOffWQ} offen{NT}", "wq")
        if j < 7: a(f"s_add_u32 s{sOffWQ}, s{sOffWQ}, 8192")
    base(S_KA, 6); base(S_KB, 16); base(S_VA, 8); base(S_VB, 18); base(S_OUT, 24)
    def load_tile(dst_is_a, dst, vo, vo2, srd_, soff, tag):
        for j in range(8):
            r = (ar if dst_is_a else vr)(dst + 4 * j)
            a.vmem(f"buffer_load_dwordx4 {r}, v{vo if j < 4 else vo2}, {srd(srd_)}, s{soff} offen offset:{(j & 3) * 1024}{NT}", tag)
    def load_KB(t):
        a(f"s_add_u32 s{sT0}, s{sOffB}, {t * 32768}")
        load_tile(True, 32 + 32 * t, vK, vK2, S_KB, sT0, f"KB{t}")
    def load_VB(t, buf):
        a(f"s_add_u32 s{sT0}, s{sOffB}, {t * 32768}")
        load_tile(False, VB[buf], vV, vV2, S_VB, sT0, f"VB{t}")
    load_tile(True, 0, vK, vK2, S_KA, sOffA, "KA")
    load_KB(0)
    a(f"s_bfe_u32 s{sT0}, s{sIDX}, 0x20002"); a(f"s_lshl_b32 s{sT1}, s{sKVH}, 2"); a(f"s_add_u32 s{sT0}, s{sT0}, s{sT1}")
    a(f"s_lshl_b32 s{sT0}, s{sT0}, 2"); a(f"s_and_b32 s{sT1}, s{sIDX}, 3"); a(f"s_add_u32 s{sT0}, s{sT0}, s{sT1}")
    a(f"s_lshl_b32 s{sOffWO}, s{sT0}, 15"); a(f"s_lshl_b32 s{sT1}, s{sW}, 8"); a(f"s_add_u32 s{sOffWO}, s{sOffWO}, s{sT1}")
    a(f"s_lshl_b32 s{sT1}, s{sB}, 7"); a(f"s_add_u32 s{sT0}, s{sT0}, s{sT1}"); a(f"s_lshl_b32 s{sT0}, s{sT0}, 12")
    a(f"s_add_u32 s{sPOcon}, s{sT0}, {POOFF}")
    a(f"s_lshl_b32 s{sT1}, s{sW}, 9"); a(f"s_add_u32 s{sOPpub}, s{sT0}, s{sT1}"); a(f"s_add_u32 s{sOPpub}, s{sOPpub}, {OPOFF}")
    a(f"s_lshl_b32 s{sT0}, s{sB}, 3"); a(f"s_add_u32 s{sT0}, s{sT0}, s{sKVH}"); a(f"s_lshl_b32 s{sT0}, s{sT0}, 1")
    a(f"s_lshr_b32 s{sT1}, s{sW}, 1"); a(f"s_add_u32 s{sT0}, s{sT0}, s{sT1}"); a(f"s_lshl_b32 s{sT0}, s{sT0}, 1")
    a(f"s_and_b32 s{sT1}, s{sIDX}, 1"); a(f"s_add_u32 s{sT0}, s{sT0}, s{sT1}"); a(f"s_lshl_b32 s{sT0}, s{sT0}, 11")
    a(f"s_bfe_u32 s{sT1}, s{sIDX}, 0x30001"); a(f"s_lshl_b32 s{sT1}, s{sT1}, 8"); a(f"s_add_u32 s{sT0}, s{sT0}, s{sT1}")
    a(f"s_and_b32 s{sT1}, s{sW}, 1"); a(f"s_lshl_b32 s{sT1}, s{sT1}, 7"); a(f"s_add_u32 s{sT0}, s{sT0}, s{sT1}"); a(f"s_add_u32 s{sQpub}, s{sT0}, {QOFF}")
    a(f"s_lshr_b32 s{sT0}, s{sW}, 1"); a(f"s_lshl_b32 s{sT0}, s{sT0}, 3"); a(f"s_add_u32 s{sT0}, s{sT0}, s{sKVH}"); a(f"s_lshl_b32 s{sT0}, s{sT0}, 1")
    a(f"s_add_u32 s{sT0}, s{sT0}, s{sB}"); a(f"s_lshl_b32 s{sT0}, s{sT0}, 12")
    a(f"s_and_b32 s{sT1}, s{sW}, 1"); a(f"s_lshl_b32 s{sT1}, s{sT1}, 10"); a(f"s_add_u32 s{sT0}, s{sT0}, s{sT1}"); a(f"s_add_u32 s{sQcon}, s{sT0}, {QOFF}")
    a(f"s_lshl_b32 s{sT0}, s{sB}, 3"); a(f"s_add_u32 s{sT0}, s{sT0}, s{sKVH}"); a(f"s_lshl_b32 s{sT0}, s{sT0}, 10")
    a(f"s_add_u32 s{sPLconA}, s{sT0}, {PLOFF}"); a(f"s_add_u32 s{sPLconB}, s{sT0}, {PLOFF + 16384}")
    a(f"s_lshl_b32 s{sT0}, s{sW}, 8"); a(f"s_lshl_b32 s{sT1}, s{sC}, 4"); a(f"s_add_u32 s{sT0}, s{sT0}, s{sT1}")
    a(f"s_add_u32 s{sPLpubA}, s{sPLconA}, s{sT0}"); a(f"s_add_u32 s{sPLpubB}, s{sPLconB}, s{sT0}")
    a(f"s_lshl_b32 s{sT0}, s{sKVH}, 2"); a(f"s_add_u32 s{sT0}, s{sT0}, s{sW}"); a(f"s_lshl_b32 s{sT0}, s{sT0}, 14")
    a(f"s_lshl_b32 s{sT1}, s{sIDX}, 7"); a(f"s_add_u32 s{sT0}, s{sT0}, s{sT1}")
    a(f"s_add_u32 s{sPOpubA}, s{sT0}, {POOFF}"); a(f"s_add_u32 s{sPOpubB}, s{sT0}, {POOFF + 0x80000}")
    a.wait_vm("wq")
    stamp()
    a(f"v_readfirstlane_b32 s{sT0}, v{vE}")
    a(f"s_mul_i32 s{sTAG}, s{sT0}, 0x9E3779B1"); a(f"s_add_u32 s{sTAG}, s{sTAG}, 0x85EBCA6B")
    def transpose_mfma(raw, Areg, Dbase, first, Tb=TT):
        def perms(d):
            tb = Tb + 8 * (d & 1)
            for p in range(4):
                a(f"v_perm_b32 v{tb + p}, v{raw + 8*p + 4 + d}, v{raw + 8*p + d}, s{sSelLo}")
                a(f"v_perm_b32 v{tb + 4 + p}, v{raw + 8*p + 4 + d}, v{raw + 8*p + d}, s{sSelHi}")
        def mf(d):
            tb = Tb + 8 * (d & 1)
            for k in range(2):
                i = 2 * d + k
                c = "0" if first else vr(Dbase + 4 * i)
                a(f"v_mfma_f32_16x16x32_bf16 {vr(Dbase + 4*i)}, {Areg}, {vr(tb + 4*k)}, {c}")
        perms(0)
        for d in range(1, 4):
            perms(d); mf(d - 1)
        a("s_nop 1"); mf(3)
    transpose_mfma(S0, vr(XF), DT, True)
    a(f"v_lshrrev_b32 v{vT0}, 4, v{vLane}"); a(f"v_lshlrev_b32 v{vT0}, 8, v{vT0}")
    a(f"v_and_b32 v{vT1}, 7, v{vLane}"); a(f"v_lshl_add_u32 v{vT0}, v{vT1}, 5, v{vT0}")
    a(f"s_lshl_b32 s{sT0}, s{sW}, 9"); a(f"v_add_u32 v{vT0}, s{sT0}, v{vT0}")
    a(f"s_lshr_b32 s{sT0}, s{sW}, 1"); a(f"s_lshl_b32 s{sT0}, s{sT0}, 8"); a(f"s_and_b32 s{sT1}, s{sW}, 1"); a(f"s_lshl_b32 s{sT1}, s{sT1}, 7"); a(f"s_add_u32 s{sT0}, s{sT0}, s{sT1}")
    a(f"v_lshlrev_b32 v{vT2}, 4, v{vT1}"); a(f"v_add_u32 v{vT1}, s{sT0}, v{vT2}")
    for i in range(8):
        a(f"v_add_f32_dpp v{TT + i}, v{DT + 4*i + 1}, v{DT + 4*i} row_ror:8 row_mask:0xf bank_mask:0xf")
    a("s_mov_b64 exec, 0x00ff00ff")
    a(f"ds_write_b128 v{vT0}, {vr(TT)} offset:{L_RQ}"); a(f"ds_write_b128 v{vT0}, {vr(TT + 4)} offset:{L_RQ + 16}")
    a("s_mov_b64 exec, -1")
    a("s_waitcnt lgkmcnt(0)"); a("s_barrier")
    for k in range(4):
        a(f"ds_read_b128 {vr(DT + 4*k)}, v{vT1} offset:{L_RQ + 512*k}")
    a("s_waitcnt lgkmcnt(0)")
    def sum4(dst, b0, b1, b2, b3):
        for e in range(4): a(f"v_add_f32 v{dst + e}, v{b0 + e}, v{b1 + e}")
        for e in range(4): a(f"v_add_f32 v{b2 + e}, v{b2 + e}, v{b3 + e}")
        for e in range(4): a(f"v_add_f32 v{dst + e}, v{dst + e}, v{b2 + e}")
    def pack24(dst, x0, x1, x2, x3):
        a(f"v_perm_b32 v{dst}, v{x0}, v{x1}, s{sPk0}")
        a(f"v_perm_b32 v{dst + 1}, v{x2}, v{x1}, s{sPk1}")
        a(f"v_perm_b32 v{dst + 2}, v{x3}, v{x1}, s{sPk2}")
        a(f"v_mov_b32 v{dst + 3}, s{sTAG}")
    def unpack_x1(dst, g):
        a(f"v_perm_b32 v{dst}, v{g + 2}, v{g + 1}, s{sUn0}")
        a(f"v_perm_b32 v{dst}, v{dst}, v{g}, s{sUn1}")
    sum4(TT, DT, DT + 4, DT + 8, DT + 12)
    pack24(TT + 4, TT, TT + 1, TT + 2, TT + 3)
    a("s_mov_b64 exec, 0xff")
    a.vmem(f"buffer_store_dwordx4 {vr(TT + 4)}, v{vT2}, {srd(S_WS)}, s{sQpub} offen sc1", "stQ")
    a("s_mov_b64 exec, -1")
    stamp()
    for t in (1, 2, 3): load_KB(t)
    def qpoll():
        a.vmem(f"buffer_load_dwordx4 {vr(TT + 8)}, v{vV}, {srd(S_WS)}, s{sQcon} offen sc1", "Qp")
        a.vmem(f"buffer_load_dwordx4 {vr(TT + 12)}, v{vV}, {srd(S_WS)}, s{sQcon} offen offset:2048 sc1", "Qp")
    qpoll()
    load_tile(False, VB[0], vV, vV2, S_VA, sOffA, "VA")
    load_VB(0, 1)
    a.wait_vm("Qp")
    stamp()
    def tagcheck(regs, lab_retry, lab_ok, repoll, cnt_limit=spin):
        a(f"s_mov_b32 s{sCnt}, 0")
        a.label(lab_retry)
        a(f"v_xor_b32 v{vT4}, s{sTAG}, v{regs[0]}")
        for r in regs[1:]:
            a(f"v_xor_b32 v{vT3}, s{sTAG}, v{r}"); a(f"v_or_b32 v{vT4}, v{vT4}, v{vT3}")
        a(f"v_cmp_ne_u32 vcc, 0, v{vT4}")
        a("s_cmp_eq_u64 vcc, 0"); a(f"s_cbranch_scc1 {lab_ok}")
        a(f"s_add_u32 s{sCnt}, s{sCnt}, 1"); a(f"s_cmp_gt_u32 s{sCnt}, {cnt_limit}"); a(f"s_cbranch_scc1 {lab_ok}")
        saved = list(a.vm)
        repoll(); a("s_waitcnt vmcnt(0)")
        a.vm = saved
        a(f"s_branch {lab_retry}")
        a.label(lab_ok)
    tagcheck([TT + 11, TT + 15], "L_q_retry", "L_q_ok", qpoll)
    unpack_x1(TT, TT + 8); unpack_x1(TT + 1, TT + 12)
    a(f"v_add_f32 v{TT + 2}, v{TT + 8}, v{TT + 12}")
    a(f"v_add_f32 v{TT + 3}, v{TT}, v{TT + 1}")
    a(f"v_add_f32 v{TT + 4}, v{TT + 9}, v{TT + 13}")
    a(f"v_add_f32 v{TT + 5}, v{TT + 10}, v{TT + 14}")
    a(f"v_cvt_pk_bf16_f32 v{TT + 6}, v{TT + 2}, v{TT + 3}"); a(f"v_cvt_pk_bf16_f32 v{TT + 7}, v{TT + 4}, v{TT + 5}")
    a(f"s_lshl_b32 s{sT0}, s{sW}, 9")
    a(f"v_lshlrev_b32 v{vT0}, 3, v{vLane}"); a(f"v_add_u32 v{vT0}, s{sT0}, v{vT0}")
    a(f"ds_write_b64 v{vT0}, {vr(TT + 6, 2)} offset:{L_QL}")
    a("s_waitcnt lgkmcnt(0)"); a("s_barrier")
    a(f"ds_read_b128 {vr(QA)}, v{vK} offset:{L_QL}"); a(f"ds_read_b128 {vr(QB)}, v{vK} offset:{L_QL + 1024}")
    a("s_waitcnt lgkmcnt(0)")
    stamp()
    halves = []
    for t in range(5):
        for hf in range(2): halves.append((t, hf))
    def qk_mfma(n):
        t, hf = halves[n]
        q = QA if t == 0 else QB
        return [f"v_mfma_f32_16x16x32_bf16 {vr(DT + 16*(n & 1) + 4*k)}, {ar(32*t + 4*(4*hf + k))}, {vr(q)}, 0" for k in range(4)]
    def qk_dpp(n):
        t, hf = halves[n]
        d = DT + 16 * (n & 1)
        s = S0 + 8 * t + 4 * hf
        o = []
        for step, perm in ((1, "[1,2,3,0]"), (2, "[2,3,0,1]"), (3, "[3,0,1,2]")):
            for k in range(4):
                src1 = d + 4 * k if step == 1 else s + k
                o.append(f"v_add_f32_dpp v{s + k}, v{d + 4*k + step}, v{src1} quad_perm:{perm} row_mask:0xf bank_mask:0xf")
        return o
    for i in qk_mfma(0): a(i)
    for n in range(1, 10):
        m = qk_mfma(n); dp = qk_dpp(n - 1)
        for k in range(4):
            a(m[k])
            for i in dp[3*k:3*k + 3]: a(i)
        if n == 2: load_VB(1, 2)
    for i in qk_dpp(9): a(i)
    stamp()
    def xrow_reduce(reg, op):
        a(f"v_mov_b32 v{vT0}, v{reg}"); a(f"v_permlane16_swap_b32 v{reg}, v{vT0}"); a(f"{op} v{reg}, v{reg}, v{vT0}")
        a(f"v_mov_b32 v{vT0}, v{reg}"); a(f"v_permlane32_swap_b32 v{reg}, v{vT0}"); a(f"{op} v{reg}, v{reg}, v{vT0}")
    def softmax(sbase, n, mreg, lreg):
        a(f"v_max3_f32 v{mreg}, v{sbase}, v{sbase + 1}, v{sbase + 2}")
        i = 3
        while i + 1 < n:
            a(f"v_max3_f32 v{mreg}, v{mreg}, v{sbase + i}, v{sbase + i + 1}"); i += 2
        if i < n: a(f"v_max_f32 v{mreg}, v{mreg}, v{sbase + i}")
        xrow_reduce(mreg, "v_max_f32")
        a(f"v_mul_f32 v{mreg}, s{sSC}, v{mreg}")
        for i in range(n): a(f"v_fma_f32 v{sbase + i}, v{sbase + i}, s{sSC}, -v{mreg}")
        for i in range(n): a(f"v_exp_f32 v{sbase + i}, v{sbase + i}")
        a(f"v_add_f32 v{lreg}, v{sbase}, v{sbase + 1}")
        for i in range(2, n): a(f"v_add_f32 v{lreg}, v{lreg}, v{sbase + i}")
        for t in range(n // 8):
            for k in range(4):
                a(f"v_cvt_pk_bf16_f32 v{sbase + 8*t + k}, v{sbase + 8*t + 2*k}, v{sbase + 8*t + 2*k + 1}")
        xrow_reduce(lreg, "v_add_f32")
    softmax(S0, 8, MS, MS + 1)
    softmax(S0 + 8, 32, MS + 2, MS + 3)
    a(f"v_lshlrev_b32 v{vT0}, 3, v{vLane}")
    a(f"s_lshl_b32 s{sT0}, s{sW}, 3"); a(f"v_add_u32 v{vT0}, s{sT0}, v{vT0}")
    a("s_mov_b64 exec, 0x1111")
    a(f"ds_write_b64 v{vT0}, {vr(MS, 2)} offset:{L_ML}"); a(f"ds_write_b64 v{vT0}, {vr(MS + 2, 2)} offset:{L_ML + 128}")
    a("s_mov_b64 exec, -1")
    a("s_waitcnt lgkmcnt(0)"); a("s_barrier")
    a(f"v_lshrrev_b32 v{vT0}, 4, v{vLane}"); a(f"v_lshlrev_b32 v{vT0}, 5, v{vT0}")
    a(f"v_add_u32 v{vT1}, s{sT0}, v{vT0}")
    a(f"ds_read_b128 {vr(TT)}, v{vT0} offset:{L_ML}"); a(f"ds_read_b128 {vr(TT + 4)}, v{vT0} offset:{L_ML + 16}")
    a(f"ds_read_b128 {vr(TT + 8)}, v{vT0} offset:{L_ML + 128}"); a(f"ds_read_b128 {vr(TT + 12)}, v{vT0} offset:{L_ML + 128 + 16}")
    a(f"ds_read_b32 v{MS}, v{vT1} offset:{L_ML}"); a(f"ds_read_b32 v{MS + 1}, v{vT1} offset:{L_ML + 128}")
    load_VB(2, 3)
    a("s_waitcnt lgkmcnt(0)")
    def wg_lse(b, dst):
        a(f"v_max3_f32 v{vT2}, v{b}, v{b + 2}, v{b + 4}"); a(f"v_max_f32 v{vT2}, v{vT2}, v{b + 6}")
        for k in range(4): a(f"v_sub_f32 v{b + 2*k}, v{b + 2*k}, v{vT2}")
        for k in range(4): a(f"v_exp_f32 v{b + 2*k}, v{b + 2*k}")
        a(f"v_mul_f32 v{vT3}, v{b}, v{b + 1}")
        for k in range(1, 4): a(f"v_fma_f32 v{vT3}, v{b + 2*k}, v{b + 2*k + 1}, v{vT3}")
        a(f"v_log_f32 v{vT3}, v{vT3}")
        a(f"v_add_f32 v{dst}, v{vT2}, v{vT3}")
    wg_lse(TT, TT); wg_lse(TT + 8, TT + 8)
    a(f"v_mov_b32 v{TT + 3}, s{sTAG}"); a(f"v_mov_b32 v{TT + 11}, s{sTAG}")
    a(f"s_lshl_b32 s{sT0}, s{sW}, 4"); a(f"s_lshl_b64 exec, 1, s{sT0}")
    a.vmem(f"buffer_store_dwordx4 {vr(TT)}, off, {srd(S_WS)}, s{sPLpubA} sc1", "stL")
    a.vmem(f"buffer_store_dwordx4 {vr(TT + 8)}, off, {srd(S_WS)}, s{sPLpubB} sc1", "stL")
    a("s_mov_b64 exec, -1")
    stamp()
    a.wait_vm("VA")
    transpose_mfma(VB[0], vr(S0), DT, True)
    for i in range(8): a(f"v_mov_b32 v{OA + i}, v{DT + 4*i}")
    LP = XF
    def lpoll():
        a.vmem(f"buffer_load_dwordx4 {vr(XF)}, v{vV}, {srd(S_WS)}, s{sPLconA} offen sc1", "Lp")
        a.vmem(f"buffer_load_dwordx4 {vr(QA)}, v{vV}, {srd(S_WS)}, s{sPLconB} offen sc1", "Lp")
    lpoll()
    load_VB(3, 0)
    a.wait_vm("VB0")
    transpose_mfma(VB[1], vr(S0 + 8), DT, True)
    for j in range(8):
        a.vmem(f"buffer_load_dwordx4 {vr(VB[1] + 4*j)}, v{vWO if j < 4 else vWO2}, {srd(S_WO)}, s{sOffWO} offen offset:{(j & 3) * 1024}{NT}", "wo")
    a.wait_vm("VB1")
    transpose_mfma(VB[2], vr(S0 + 16), DT, False)
    stamp()
    a.wait_vm("Lp")
    tagcheck([XF + 3, QA + 3], "L_l_retry", "L_l_ok", lpoll)
    for r in (XF, QA):
        a(f"v_mov_b32 v{r + 1}, v{r}")
    for sh in (8, 4, 2, 1):
        for r in (XF, QA):
            a(f"v_max_f32_dpp v{r + 2}, v{r + 1}, v{r + 1} row_ror:{sh} row_mask:0xf bank_mask:0xf")
        for r in (XF, QA):
            a(f"v_mov_b32 v{r + 1}, v{r + 2}")
    for r in (XF, QA): a(f"v_sub_f32 v{r}, v{r}, v{r + 1}")
    for r in (XF, QA): a(f"v_exp_f32 v{r}, v{r}")
    for sh in (8, 4, 2, 1):
        for r in (XF, QA):
            a(f"v_add_f32_dpp v{r + 2}, v{r}, v{r} row_ror:{sh} row_mask:0xf bank_mask:0xf")
        for r in (XF, QA):
            a(f"v_mov_b32 v{r}, v{r + 2}")
    for r in (XF, QA): a(f"v_log_f32 v{r}, v{r}")
    for r in (XF, QA): a(f"v_add_f32 v{r}, v{r}, v{r + 1}")
    a(f"v_sub_f32 v{MS}, v{MS}, v{XF}"); a(f"v_sub_f32 v{MS + 1}, v{MS + 1}, v{QA}")
    a(f"v_exp_f32 v{MS}, v{MS}"); a(f"v_exp_f32 v{MS + 1}, v{MS + 1}")
    a(f"v_lshlrev_b32 v{vLds}, 5, v{vLane}"); a(f"s_lshl_b32 s{sT0}, s{sW}, 11"); a(f"v_add_u32 v{vLds}, s{sT0}, v{vLds}")
    a(f"v_and_b32 v{vT0}, 31, v{vLane}"); a(f"v_lshlrev_b32 v{vT1}, 4, v{vT0}"); a(f"s_lshl_b32 s{sT0}, s{sW}, 9"); a(f"v_add_u32 v{vK}, s{sT0}, v{vT1}")
    a(f"v_lshrrev_b32 v{vT1}, 3, v{vT0}"); a(f"v_lshlrev_b32 v{vK2}, 12, v{vT1}"); a(f"v_and_b32 v{vT1}, 7, v{vT0}"); a(f"v_lshl_add_u32 v{vK2}, v{vT1}, 4, v{vK2}")
    def publish(src_regs, creg, lreg_off, spub, tag):
        for i in range(8): a(f"v_mul_f32 v{TT + i}, v{src_regs[i]}, v{creg}")
        a(f"ds_write_b128 v{vLds}, {vr(TT)} offset:{lreg_off}"); a(f"ds_write_b128 v{vLds}, {vr(TT + 4)} offset:{lreg_off + 16}")
        a("s_waitcnt lgkmcnt(0)"); a("s_barrier")
        for k in range(4):
            a(f"ds_read_b128 {vr(TT + 4*k)}, v{vK} offset:{lreg_off + 2048*k}")
        a("s_waitcnt lgkmcnt(0)")
        sum4(TT, TT, TT + 4, TT + 8, TT + 12)
        pack24(TT + 4, TT, TT + 1, TT + 2, TT + 3)
        a("s_mov_b32 exec_hi, 0")
        a.vmem(f"buffer_store_dwordx4 {vr(TT + 4)}, v{vK2}, {srd(S_WS)}, s{spub} offen sc1", tag)
        a("s_mov_b64 exec, -1")
    publish([OA + i for i in range(8)], MS, L_RA, sPOpubA, "stA")
    stamp()
    a.wait_vm("VB2")
    transpose_mfma(VB[3], vr(S0 + 24), DT, False)
    a.wait_vm("VB3")
    stamp()
    transpose_mfma(VB[0], vr(S0 + 32), DT, False)
    publish([DT + 4*i for i in range(8)], MS + 1, L_RB, sPOpubB, "stB")
    stamp()
    a(f"v_lshrrev_b32 v{vT0}, 5, v{vLane}"); a(f"v_lshlrev_b32 v{vV}, 11, v{vT0}"); a(f"v_and_b32 v{vT0}, 31, v{vLane}"); a(f"v_lshl_add_u32 v{vV}, v{vT0}, 4, v{vV}")
    H2 = S0
    def h2poll():
        for n in range(4):
            a.vmem(f"buffer_load_dwordx4 {vr(H2 + 4*n)}, v{vV}, {srd(S_WS)}, s{sPOcon} offen offset:{512*n} sc1", "H2")
    a(f"s_cmp_eq_u32 s{sW}, 0"); a("s_cbranch_scc0 L_s2_skip1")
    saved = list(a.vm)
    h2poll()
    a.vm = saved
    a.label("L_s2_skip1")
    a(f"s_cmp_eq_u32 s{sW}, 0"); a("s_cbranch_scc1 L_s2_w0")
    a("s_waitcnt vmcnt(1)"); a("s_branch L_s2_wj")
    a.label("L_s2_w0"); a("s_waitcnt vmcnt(5)")
    a.label("L_s2_wj")
    a.vm = []
    WT = VB[2]
    for d in range(4):
        for p in range(4):
            a(f"v_perm_b32 v{WT + 8*d + p}, v{VB[1] + 8*p + 4 + d}, v{VB[1] + 8*p + d}, s{sSelLo}")
            a(f"v_perm_b32 v{WT + 8*d + 4 + p}, v{VB[1] + 8*p + 4 + d}, v{VB[1] + 8*p + d}, s{sSelHi}")
    stamp()
    a(f"s_cmp_eq_u32 s{sW}, 0"); a("s_cbranch_scc0 L_s2_join")
    a("s_waitcnt vmcnt(0)")
    tagcheck([H2 + 3, H2 + 7, H2 + 11, H2 + 15], "L_h2_retry", "L_h2_ok", h2poll)
    a.vm = []
    for n in range(4): unpack_x1(H2 + 4*n + 3, H2 + 4*n)
    sum4(H2, H2, H2 + 4, H2 + 8, H2 + 12)
    for e in range(4): a(f"v_add_f32_dpp v{H2 + 4 + e}, v{H2 + e}, v{H2 + e} row_ror:8 row_mask:0xf bank_mask:0xf")
    a(f"v_permlane16_swap_b32 v{H2 + 4}, v{H2 + 5}"); a(f"v_permlane16_swap_b32 v{H2 + 7}, v{H2 + 6}")
    a(f"v_add_f32 v{H2 + 4}, v{H2 + 4}, v{H2 + 5}"); a(f"v_add_f32 v{H2 + 7}, v{H2 + 7}, v{H2 + 6}")
    a(f"v_cvt_pk_bf16_f32 v{H2}, v{H2 + 4}, v{H2 + 7}")
    a(f"v_lshrrev_b32 v{vT0}, 5, v{vLane}"); a(f"v_lshlrev_b32 v{vT0}, 6, v{vT0}"); a(f"v_and_b32 v{vT1}, 7, v{vLane}"); a(f"v_lshl_add_u32 v{vT0}, v{vT1}, 3, v{vT0}")
    a(f"v_bfe_u32 v{vT1}, v{vLane}, 4, 1"); a(f"v_lshl_add_u32 v{vT0}, v{vT1}, 2, v{vT0}")
    a(f"ds_write_b32 v{vT0}, v{H2} offset:{L_O2}")
    a("s_waitcnt lgkmcnt(0)")
    a.label("L_s2_join")
    a("s_barrier")
    stamp()
    a(f"v_bfe_u32 v{vT0}, v{vLane}, 2, 1"); a(f"v_lshlrev_b32 v{vT0}, 6, v{vT0}"); a(f"v_lshrrev_b32 v{vT1}, 4, v{vLane}"); a(f"v_lshl_add_u32 v{vT0}, v{vT1}, 4, v{vT0}")
    a(f"ds_read_b128 {vr(XF)}, v{vT0} offset:{L_O2}")
    a(f"v_lshlrev_b32 v{vK}, 11, v{vT1}"); a(f"v_and_b32 v{vT1}, 15, v{vLane}"); a(f"v_lshl_add_u32 v{vK}, v{vT1}, 4, v{vK}")
    a("s_waitcnt lgkmcnt(0)")
    for i in range(8):
        a(f"v_mfma_f32_16x16x32_bf16 {vr(DT + 4*i)}, {vr(XF)}, {vr(WT + 4*i)}, 0")
    pack24(TT, DT, DT + 4, DT + 8, DT + 12)
    pack24(TT + 4, DT + 16, DT + 20, DT + 24, DT + 28)
    a("s_mov_b32 exec_hi, 0")
    a(f"buffer_store_dwordx4 {vr(TT)}, v{vK}, {srd(S_WS)}, s{sOPpub} offen sc1")
    a(f"buffer_store_dwordx4 {vr(TT + 4)}, v{vK}, {srd(S_WS)}, s{sOPpub} offen offset:256 sc1")
    a("s_mov_b64 exec, -1")
    stamp()
    a(f"s_cmp_eq_u32 s{sW}, 0"); a("s_cbranch_scc0 L_fin")
    a(f"s_lshl_b32 s{sT0}, s{sKVH}, 1"); a(f"s_add_u32 s{sT0}, s{sT0}, s{sB}")
    a(f"s_lshr_b32 s{sT1}, s{sT0}, 3"); a(f"s_lshl_b32 s{sT2}, s{sT1}, 19")
    a(f"s_and_b32 s{sT3}, s{sT0}, 7"); a(f"s_lshl_b32 s{sT3}, s{sT3}, 9"); a(f"s_add_u32 s{sT2}, s{sT2}, s{sT3}")
    a(f"s_lshl_b32 s{sT3}, s{sC}, 4"); a(f"s_add_u32 s{sT2}, s{sT2}, s{sT3}"); a(f"s_add_u32 s{sPOcon}, s{sT2}, {OPOFF}")
    a(f"s_add_u32 s{sPOpubA}, s{sPOcon}, {131072}"); a(f"s_add_u32 s{sPOpubB}, s{sPOcon}, {2*131072}"); a(f"s_add_u32 s{sOPpub}, s{sPOcon}, {3*131072}")
    a(f"s_bfe_u32 s{sT2}, s{sT0}, 0x10002"); a(f"s_lshl_b32 s{sT2}, s{sT2}, 11"); a(f"s_lshl_b32 s{sT1}, s{sT1}, 10"); a(f"s_add_u32 s{sT2}, s{sT2}, s{sT1}")
    a(f"s_and_b32 s{sT1}, s{sT0}, 3"); a(f"s_lshl_b32 s{sT1}, s{sT1}, 8"); a(f"s_add_u32 s{sT2}, s{sT2}, s{sT1}"); a(f"s_add_u32 s{sQpub}, s{sT2}, s{sT3}")
    a(f"v_lshrrev_b32 v{vT0}, 1, v{vLane}"); a(f"v_lshlrev_b32 v{vV}, 12, v{vT0}"); a(f"v_and_b32 v{vT0}, 1, v{vLane}"); a(f"v_lshl_add_u32 v{vV}, v{vT0}, 8, v{vV}")
    a(f"v_lshlrev_b32 v{vK2}, 3, v{vT0}"); a(f"v_lshrrev_b32 v{vT0}, 4, v{vLane}"); a(f"v_lshl_add_u32 v{vK2}, v{vT0}, 1, v{vK2}")
    def h3poll():
        for n, so in enumerate((sPOcon, sPOpubA, sPOpubB, sOPpub)):
            a.vmem(f"buffer_load_dwordx4 {vr(H2 + 4*n)}, v{vV}, {srd(S_WS)}, s{so} offen sc1", "H3")
    h3poll()
    a("s_waitcnt vmcnt(0)")
    tagcheck([H2 + 3, H2 + 7, H2 + 11, H2 + 15], "L_h3_retry", "L_h3_ok", h3poll)
    stamp()
    for n in range(4): unpack_x1(H2 + 4*n + 3, H2 + 4*n)
    sum4(H2, H2, H2 + 4, H2 + 8, H2 + 12)
    a(f"v_permlane16_swap_b32 v{H2}, v{H2 + 3}"); a(f"v_permlane16_swap_b32 v{H2 + 1}, v{H2 + 2}")
    a(f"v_add_f32 v{H2}, v{H2}, v{H2 + 3}"); a(f"v_add_f32 v{H2 + 1}, v{H2 + 1}, v{H2 + 2}")
    a(f"v_permlane32_swap_b32 v{H2}, v{H2 + 1}")
    a(f"v_add_f32 v{H2}, v{H2}, v{H2 + 1}")
    for sh in (2, 4, 8):
        a(f"v_add_f32_dpp v{H2 + 1}, v{H2}, v{H2} row_ror:{sh} row_mask:0xf bank_mask:0xf"); a(f"v_mov_b32 v{H2}, v{H2 + 1}")
    a(f"v_cvt_pk_bf16_f32 v{H2}, v{H2}, v{H2}")
    a("s_mov_b32 exec_lo, 0x00030003"); a("s_mov_b32 exec_hi, 0x00030003")
    a(f"buffer_store_short v{H2}, v{vK2}, {srd(S_OUT)}, s{sQpub} offen")
    a("s_mov_b64 exec, -1")
    a("s_cmp_eq_u32 s2, 0"); a("s_cbranch_scc0 L_fin")
    a(f"v_mov_b32 v{vT0}, s{sTAG}")
    a("s_mov_b64 exec, 1")
    a(f"buffer_store_dword v{vT0}, off, {srd(S_WS)}, 0 offset:{EPOCH} sc1")
    a("s_mov_b64 exec, -1")
    a.label("L_fin")
    if stamps:
        stamp()
        a(f"s_lshl_b32 s{sT0}, s2, 2"); a(f"s_add_u32 s{sT0}, s{sT0}, s{sW}"); a(f"s_lshl_b32 s{sT0}, s{sT0}, 8"); a(f"s_add_u32 s{sT0}, s{sT0}, {STAMP}")
        a("s_memtime s[100:101]"); a("s_waitcnt lgkmcnt(0)"); a("v_writelane_b32 v0, s100, 61")
        a("s_memrealtime s[100:101]"); a("s_waitcnt lgkmcnt(0)"); a("v_writelane_b32 v0, s100, 59")
        a("s_getreg_b32 s100, hwreg(HW_REG_XCC_ID)"); a("v_writelane_b32 v0, s100, 63")
        a(f"v_lshlrev_b32 v{vT0}, 2, v{vLane}")
        a(f"buffer_store_dword v0, v{vT0}, {srd(S_WS)}, s{sT0} offen")
        if dbg:
            a(f"v_readlane_b32 s100, v0, 0"); a("s_not_b32 s100, s100"); a("s_nop 3"); a("v_writelane_b32 v0, s100, 0")
            a(f"v_lshlrev_b32 v{vT0}, 2, v{vLane}")
            a("s_mov_b64 exec, 0xffff")
            a(f"global_atomic_umax v{vT0}, v0, s[78:79]")
            a("s_mov_b64 exec, -1")
    a.label("L_end")
    a("s_endpgm")
    body = a.finalize()
    head = f"""; Fused two-branch GQA decode: q projection, split-KV attention, output projection in one launch.
; @launch grid=(256,1,1) block=(256,1,1) lds={L_END}
.amdgcn_target "amdgcn-amd-amdhsa--gfx950"
.text
.globl {KN}
.p2align 8
.type {KN},@function
{KN}:
"""
    tail = f""".section .rodata,"a"
.p2align 6
.amdhsa_kernel {KN}
  .amdhsa_next_free_vgpr 416
  .amdhsa_next_free_sgpr 102
  .amdhsa_accum_offset 256
  .amdhsa_group_segment_fixed_size 0
  .amdhsa_kernarg_size 104
  .amdhsa_user_sgpr_count 2
  .amdhsa_user_sgpr_kernarg_segment_ptr 1
  .amdhsa_system_sgpr_workgroup_id_x 1
.end_amdhsa_kernel
"""
    return head + body + tail, a.nops, nstamp[0]

if __name__ == "__main__":
    txt, nops, ns = gen(stamps=False)
    open("k_main.s", "w").write(txt)
    print("main: lines", txt.count("\n"), "nops", nops)
    txt, nops, ns = gen(stamps=True, dbg=True)
    open("k_dbg.s", "w").write(txt)
    txt, nops, ns = gen(stamps=True)
    open("k_stamp.s", "w").write(txt)
    print("stamp: nstamps", ns)
```
